```python
import torch

def _softmax(x, axis=-1):
    return torch.softmax(x, dim=axis)
def _gelu(x):
    return torch.nn.functional.gelu(x, approximate="tanh")
def _silu(x):
    return torch.nn.functional.silu(x)
def _sigmoid(x):
    return torch.sigmoid(x)
def _layernorm(x, axis=-1, eps=1e-5):
    m = x.mean(dim=axis, keepdim=True)
    v = x.var(dim=axis, keepdim=True, unbiased=False)
    return (x - m) / torch.sqrt(v + eps)
def _scatter_add(tgt, idx, src, axis=0):
    return tgt.clone().index_add_(axis, idx, src)
def _segment_sum(src, seg, n):
    out = torch.zeros((n,) + src.shape[1:], dtype=src.dtype)
    return out.index_add_(0, seg, src)
def _pad(x, pw):
    flat = tuple(v for pair in reversed(pw) for v in pair)
    return torch.nn.functional.pad(x, flat)

kernel_name = 'sequential_preLN__mha_block__mixer_token_mlp__prompt'

def setup_inputs():

    _w = (lambda a: (lambda t: t.to(torch.bfloat16) if t.is_floating_point() else t)(torch.as_tensor(a)))
    def _A_setup():
        B, S, D, H = 1, 2048, 512, 32
        return {
            "x": _w((lambda *s: torch.randn(*s, dtype=torch.bfloat16) * 0.05)(B, S, D)),
            "wqkv": _w((lambda *s: torch.randn(*s, dtype=torch.bfloat16) * 0.05)(D, 3 * D)),
            "wo": _w((lambda *s: torch.randn(*s, dtype=torch.bfloat16) * 0.05)(D, D)),
        }
    _A_in = _A_setup()

    def _B_setup():
        B, S, D, F = 1, 2048, 512, 1376
        return {
            "x": _w((lambda *s: torch.randn(*s, dtype=torch.bfloat16) * 0.05)(B, S, D)),
            "w1": _w((lambda *s: torch.randn(*s, dtype=torch.bfloat16) * 0.8)(S, F) * (S ** -0.5)),
            "b1": _w((lambda *s: torch.randn(*s, dtype=torch.bfloat16) * 12.8)(F) * 0.02),
            "w2": _w((lambda *s: torch.randn(*s, dtype=torch.bfloat16) * 0.2)(F, S) * (F ** -0.5)),
            "b2": _w((lambda *s: torch.randn(*s, dtype=torch.bfloat16) * 3.2)(S) * 0.02),
        }
    _B_in = _B_setup()

    return {
        "A_x": _A_in["x"],
        "A_wqkv": _A_in["wqkv"],
        "A_wo": _A_in["wo"],
        "B_x": _B_in["x"],
        "B_w1": _B_in["w1"],
        "B_b1": _B_in["b1"],
        "B_w2": _B_in["w2"],
        "B_b2": _B_in["b2"],
    }

def reference(A_x, A_wqkv, A_wo, B_x, B_w1, B_b1, B_w2, B_b2):
    def _A_ref(x, wqkv, wo):
        B, S, D = x.shape
        H = 32
        Dh = D // H
        qkv = (lambda x, *d: x.permute(*d))((x @ wqkv).reshape(B, S, 3, H, Dh), 2, 0, 3, 1, 4)
        q, k, v = qkv[0], qkv[1], qkv[2]
        scores = torch.einsum("bhqd,bhkd->bhqk", q, k) * (Dh ** -0.5)
        p = _softmax(scores, axis=-1)
        o = torch.einsum("bhqk,bhkd->bhqd", p, v)
        return (lambda x, *d: x.permute(*d))(o, 0, 2, 1, 3).reshape(B, S, D) @ wo

    def _B_ref(x, w1, b1, w2, b2):
        B, S, D = x.shape
        h = _layernorm(x, axis=-1)
        u = torch.einsum("bsd,sf->bdf", h, w1) + b1
        u = _gelu(u)
        y = torch.einsum("bdf,fs->bds", u, w2) + b2
        return (lambda x, *d: x.permute(*d))(y, 0, 2, 1)

    x = A_x
    h = x + _A_ref(_layernorm(x, axis=-1), A_wqkv, A_wo)
    h2 = h + _B_ref(_layernorm(h, axis=-1), B_w1, B_b1, B_w2, B_b2)
    return h2
```

```python
import re

TRANS = ("v_exp_f32", "v_log_f32", "v_rcp_f32", "v_rsq_f32", "v_sqrt_f32", "v_sin_f32", "v_cos_f32",
         "v_exp_f16", "v_rcp_f16", "v_rsq_f16")
RMW_DST = ("v_fmac_f32", "v_dot2c_f32_bf16", "v_permlane32_swap_b32", "v_permlane16_swap_b32", "v_fmac_f16",
           "v_pk_fmac_f16")

_reg_re = re.compile(r"^(-?)(abs\()?([vas])(?:(\d+)|\[(\d+):(\d+)\])\)?$")


def parse_reg(tok):
    tok = tok.strip()
    if tok == "vcc":
        return [("s", 106), ("s", 107)]
    if tok == "exec":
        return [("s", 126), ("s", 127)]
    if tok == "m0":
        return [("s", 124)]
    m = _reg_re.match(tok)
    if not m:
        return []
    k = m.group(3)
    if m.group(4) is not None:
        return [(k, int(m.group(4)))]
    return [(k, i) for i in range(int(m.group(5)), int(m.group(6)) + 1)]


def split_ops(s):
    out, depth, cur = [], 0, ""
    for ch in s:
        if ch == "[" or ch == "(":
            depth += 1
        if ch == "]" or ch == ")":
            depth -= 1
        if ch == "," and depth == 0:
            out.append(cur.strip())
            cur = ""
        else:
            cur += ch
    if cur.strip():
        out.append(cur.strip())
    return out


def v(i):
    return "v%d" % i


def vr(i, n):
    assert i % 2 == 0 or n == 1, "vgpr tuple must be even aligned: %d" % i
    return "v%d" % i if n == 1 else "v[%d:%d]" % (i, i + n - 1)


def a(i):
    return "a%d" % i


def ar(i, n):
    return "a%d" % i if n == 1 else "a[%d:%d]" % (i, i + n - 1)


def s(i):
    return "s%d" % i


def sr(i, n):
    return "s%d" % i if n == 1 else "s[%d:%d]" % (i, i + n - 1)


class Asm:
    def __init__(self):
        self.lines = []
        self.pos = 0
        self.w = {}
        self.mfma_c_read = {}
        self.store_data = {}
        self.vm = []
        self.nops = 0
        self.uid = 0

    def raw(self, text):
        self.lines.append(text)

    def comment(self, text):
        self.lines.append("; " + text)

    def label(self, name):
        self.lines.append(name + ":")

    def newlabel(self, base):
        self.uid += 1
        return "%s_%d" % (base, self.uid)

    def nop(self, n):
        while n > 0:
            k = min(n, 16)
            self.lines.append("s_nop %d" % (k - 1))
            self.pos += k
            self.nops += k
            n -= k

    def fence(self):
        worst = 0
        for r_, (p, k) in self.w.items():
            need = {"mfma": 12, "valu": 2, "trans": 2, "dot": 3, "salu": 1}.get(k, 0)
            if r_[0] == "s" and k in ("valu", "trans"):
                need = 5
            worst = max(worst, p + need + 1 - self.pos)
        if worst > 0:
            self.nop(worst)

    def i(self, text, tag=None):
        text = text.strip()
        sp = text.split(None, 1)
        op = sp[0]
        rest = sp[1] if len(sp) > 1 else ""
        ops = split_ops(rest)
        if ops:
            last = ops[-1].split()
            ops[-1] = last[0]
            mods = last[1:]
        else:
            mods = []
        base = op
        for suf in ("_e32", "_e64", "_dpp", "_sdwa"):
            if base.endswith(suf):
                base = base[: -len(suf)]
        is_mfma = base.startswith("v_mfma")
        is_valu = base.startswith("v_") and not is_mfma
        is_vmem = base.startswith("buffer_") or base.startswith("global_")
        is_ds = base.startswith("ds_")
        is_salu = base.startswith("s_") and not is_vmem
        dpp = op.endswith("_dpp") or any(m.startswith("row_") or m.startswith("quad_perm") for m in mods)
        dst, src = [], []
        regs = [parse_reg(o) for o in ops]
        if is_mfma:
            dst = regs[0]
            src = regs[1] + regs[2]
            srcc = regs[3]
        elif is_valu:
            if base.startswith("v_cmp"):
                dst = regs[0]
                src = sum(regs[1:], [])
            elif base in ("v_add_co_u32", "v_addc_co_u32", "v_sub_co_u32"):
                dst = regs[0] + regs[1]
                src = sum(regs[2:], [])
            elif base in ("v_permlane32_swap_b32", "v_permlane16_swap_b32"):
                dst = regs[0] + regs[1]
                src = regs[0] + regs[1]
            else:
                dst = regs[0]
                src = sum(regs[1:], [])
                if base in RMW_DST or dpp:
                    src = src + regs[0]
                if base == "v_cndmask_b32" and len(ops) == 3:
                    src = src + parse_reg("vcc")
        elif is_vmem:
            is_load = "load" in base
            is_atomic = "atomic" in base
            lds = "lds" in mods or "_lds_" in base
            if is_load and not lds:
                dst = regs[0]
                src = sum(regs[1:], [])
            else:
                src = sum(regs, [])
            if lds:
                src = src + parse_reg("m0")
        elif is_ds:
            if base.startswith("ds_read") or base.startswith("ds_bpermute") or base.startswith("ds_swizzle"):
                dst = regs[0]
                src = sum(regs[1:], [])
            else:
                src = sum(regs, [])
        elif is_salu:
            if base.startswith("s_cmp") or base.startswith("s_waitcnt") or base.startswith("s_cbranch") or base in (
                    "s_barrier", "s_branch", "s_nop", "s_sleep", "s_endpgm", "s_setprio", "s_bitcmp1_b32"):
                src = sum(regs, [])
            else:
                dst = regs[0] if regs else []
                src = sum(regs[1:], [])
        need = 0

        def req(reg, kinds, dist, table=None):
            nonlocal need
            t = self.w if table is None else table
            if reg in t:
                e = t[reg]
                if table is None:
                    p, k = e
                    if k not in kinds:
                        return
                else:
                    p = e
                need = max(need, p + dist + 1 - self.pos)

        if is_mfma:
            for r_ in src:
                req(r_, ("valu", "trans", "dot"), 2)
                req(r_, ("mfma",), 12)
            for r_ in srcc:
                req(r_, ("valu", "trans", "dot"), 2)
                if r_ in self.w and self.w[r_][1] == "mfma":
                    if self.w_mfma_range.get(r_) != tuple(dst) or tuple(srcc) != tuple(dst):
                        req(r_, ("mfma",), 10)
            for r_ in dst:
                if r_ not in srcc:
                    if r_ in self.w and self.w[r_][1] == "mfma" and self.w_mfma_range.get(r_) != tuple(dst):
                        req(r_, ("mfma",), 10)
        else:
            for r_ in src + dst:
                req(r_, ("mfma",), 12)
            if is_valu:
                for r_ in src:
                    if base not in TRANS:
                        req(r_, ("trans",), 1)
                    if not base.startswith("v_dot2"):
                        req(r_, ("dot",), 3)
                    if r_[0] == "s":
                        req(r_, ("valu", "trans"), 2)
                if base.startswith("v_dot2"):
                    for r_ in sum(regs[1:3], []):
                        req(r_, ("dot",), 3)
                for r_ in dst:
                    if not base.startswith("v_dot2"):
                        req(r_, ("dot",), 3)
                    req(r_, None, 7, self.mfma_c_read)
                    req(r_, None, 2, self.store_data)
                if dpp or base.startswith("v_permlane"):
                    for r_ in src:
                        req(r_, ("valu", "trans", "dot"), 2)
                if base in ("v_readfirstlane_b32", "v_readlane_b32"):
                    for r_ in src:
                        req(r_, ("valu", "trans", "dot"), 1)
            if is_vmem or is_ds:
                for r_ in src:
                    if r_[0] == "s":
                        req(r_, ("valu", "trans"), 5)
                        if r_ == ("s", 124):
                            req(r_, ("salu",), 1)
                    else:
                        req(r_, ("dot",), 3)
                        req(r_, ("trans",), 1)
                for r_ in dst:
                    req(r_, None, 1, self.store_data)
            if is_salu:
                for r_ in src:
                    req(r_, ("valu", "trans"), 3)
        if need > 0:
            self.nop(need)
        self.lines.append(text)
        p = self.pos
        self.pos += 1
        if op == "s_nop":
            self.pos += int(ops[0])
        kind = None
        if is_mfma:
            kind = "mfma"
        elif is_valu:
            kind = "trans" if base in TRANS else ("dot" if base.startswith("v_dot2") else "valu")
        elif is_salu:
            kind = "salu"
        else:
            kind = "mem"
        for r_ in dst:
            self.w[r_] = (p, kind)
            if is_mfma:
                self.w_mfma_range[r_] = tuple(dst)
        if is_mfma:
            for r_ in srcc:
                self.mfma_c_read[r_] = p
        if is_vmem and not ("load" in base and "atomic" not in base) and ("x4" in base or "x3" in base):
            for r_ in regs[0] + (regs[1] if len(regs) > 1 else []):
                if r_[0] != "s":
                    self.store_data[r_] = p
        if is_vmem and base not in ("buffer_inv", "buffer_wbl2"):
            self.vm.append(tag)
        return self

    w_mfma_range = {}

    def vm_wait(self, tag):
        idx = [k for k, t in enumerate(self.vm) if t == tag]
        if not idx:
            return
        n = len(self.vm) - 1 - idx[-1]
        assert n <= 63, "vmcnt too large %d" % n
        self.i("s_waitcnt vmcnt(%d)" % n)
        self.vm = self.vm[idx[-1] + 1:]

    def vm_wait_all(self):
        self.i("s_waitcnt vmcnt(0)")
        self.vm = []

    def text(self):
        return "\n".join(self.lines) + "\n"
```

```python
import sys
import struct
sys.path.insert(0, "work")
from asmlib import Asm, v, vr, a, ar, s, sr

NAME = "sequential_preLN__mha_block__mixer_token_mlp__prompt"

WS_CNT = 0x0
WS_STATS = 0x8000
WS_KMAX = 0x48000
WS_QF = 0x100000
WS_KV = 0x300000
WS_OF = 0x800000
WS_HT = 0xA00000
WS_UF = 0xC00000
WS_DBG = 0xE00000
WS_SIZE = 0x1000000
C_B1, C_B2, C_B3, C_B4, C_B5 = 0, 16, 24, 56, 64
NCNT = 72

S_KARG = 0
S_WG = 2
S_W = 3
SRD_X, SRD_WQ, SRD_WO, SRD_W1, SRD_W2, SRD_B1, SRD_B2, SRD_OUT, SRD_WS = 8, 12, 16, 20, 24, 28, 32, 36, 40
S_DBG = 44
S_XCD = 46
S_SLOT = 47
T0, T1, T2, T3, T4, T5, T6, T7 = 48, 49, 50, 51, 52, 53, 54, 55
S_A, S_B, S_C, S_D, S_E, S_F = 56, 57, 58, 59, 60, 61
S_SB, S_DB, S_FB = 62, 63, 64
S_CONST = 66
S_EXEC = 74
S_SPIN = 76
SPIN_MAX = 0x40000

V_LANE = 0


def f2u(x):
    return struct.unpack("<I", struct.pack("<f", x))[0]


def hexf(x):
    return "0x%08x" % f2u(x)


class Gen(Asm):
    def __init__(self, stop_after=99, opts=None):
        super().__init__()
        self.stop_after = stop_after
        self.opts = opts or {}

    def wave0_begin(self):
        lab = self.newlabel("L_w0")
        self.i("s_cmp_lg_u32 s%d, 0" % S_W)
        self.i("s_cbranch_scc1 %s" % lab)
        return lab

    def arrive(self, off_sgpr, vt):
        self.vm_wait_all()
        self.i("s_barrier")
        lab = self.wave0_begin()
        self.i("s_mov_b64 exec, 1")
        self.i("v_mov_b32 %s, 1" % v(vt))
        self.i("v_mov_b32 %s, s%d" % (v(vt + 1), off_sgpr))
        self.i("buffer_atomic_add %s, %s, %s, 0 offen sc1" % (v(vt), v(vt + 1), sr(SRD_WS, 4)))
        self.vm.pop()
        self.i("s_mov_b64 exec, -1")
        self.label(lab)

    def wait_cnt(self, off_sgpr, target, vt):
        lab = self.wave0_begin()
        loop = self.newlabel("L_poll")
        self.i("v_mov_b32 %s, s%d" % (v(vt + 1), off_sgpr))
        self.i("s_mov_b32 s%d, 0" % S_SPIN)
        self.label(loop)
        self.i("buffer_load_dword %s, %s, %s, 0 offen sc1" % (v(vt), v(vt + 1), sr(SRD_WS, 4)))
        self.vm.pop()
        self.i("s_waitcnt vmcnt(0)")
        self.i("v_readfirstlane_b32 s%d, %s" % (T0, v(vt)))
        self.i("s_cmp_ge_u32 s%d, %d" % (T0, target))
        self.i("s_cbranch_scc1 %s" % lab)
        self.i("s_add_u32 s%d, s%d, 1" % (S_SPIN, S_SPIN))
        self.i("s_cmp_ge_u32 s%d, 0x%x" % (S_SPIN, SPIN_MAX))
        self.i("s_cbranch_scc1 %s" % lab)
        self.i("s_sleep 1")
        self.i("s_branch %s" % loop)
        self.label(lab)
        self.i("s_barrier")

    def cross_half(self, reg, tmp, op="v_add_f32"):
        self.i("v_mov_b32 %s, %s" % (v(tmp), v(reg)))
        self.i("v_permlane32_swap_b32 %s, %s" % (v(reg), v(tmp)))
        self.i("%s %s, %s, %s" % (op, v(reg), v(reg), v(tmp)))

    def end_kernel(self):
        self.vm_wait_all()
        self.i("s_endpgm")

    def prologue(self):
        g = self
        g.i("s_cmp_ge_u32 s2, 256")
        g.i("s_cbranch_scc1 L_exit")
        g.i("s_load_dwordx16 s[48:63], s[0:1], 0")
        g.i("s_load_dwordx4 s[64:67], s[0:1], 64")
        g.i("s_load_dwordx2 s[68:69], s[0:1], 80")
        g.i("v_lshrrev_b32 v1, 6, v0")
        g.i("v_and_b32 v0, 63, v0")
        g.i("v_readfirstlane_b32 s%d, v1" % S_W)
        g.i("s_and_b32 s%d, s2, 7" % S_XCD)
        g.i("s_lshr_b32 s%d, s2, 3" % S_SLOT)
        g.i("s_waitcnt lgkmcnt(0)")

        def srd(dst, src, nbytes):
            g.i("s_mov_b32 s%d, s%d" % (dst, src))
            g.i("s_and_b32 s%d, s%d, 0xffff" % (dst + 1, src + 1))
            g.i("s_mov_b32 s%d, 0x%x" % (dst + 2, nbytes))
            g.i("s_mov_b32 s%d, 0x20000" % (dst + 3))
        srd(SRD_X, 48, 2048 * 512 * 2)
        srd(SRD_WQ, 50, 512 * 1536 * 2)
        srd(SRD_WO, 52, 512 * 512 * 2)
        srd(SRD_W1, 56, 2048 * 1376 * 2)
        srd(SRD_B1, 58, 1376 * 2)
        srd(SRD_W2, 60, 1376 * 2048 * 2)
        srd(SRD_B2, 62, 2048 * 2)
        srd(SRD_OUT, 64, 2048 * 512 * 2)
        srd(SRD_WS, 68, WS_SIZE)
        g.i("s_mov_b32 s%d, s66" % S_DBG)
        g.i("s_mov_b32 s%d, s67" % (S_DBG + 1))
        lab = g.newlabel("L_noinit")
        g.i("s_or_b32 s%d, s2, s%d" % (T0, S_W))
        g.i("s_cmp_lg_u32 s%d, 0" % T0)
        g.i("s_cbranch_scc1 %s" % lab)
        g.i("v_lshlrev_b32 v1, 8, v0")
        g.i("v_mov_b32 v2, 0")
        g.i("buffer_store_dword v2, v1, %s, 0 offen sc0 sc1" % sr(SRD_WS, 4))
        g.i("v_add_u32 v1, 0x4000, v1")
        g.i("buffer_store_dword v2, v1, %s, 0 offen sc0 sc1" % sr(SRD_WS, 4))
        g.i("s_waitcnt vmcnt(0)")
        g.i("v_mov_b32 v1, 0")
        g.i("v_mov_b32 v2, 1")
        g.i("global_store_dword v1, v2, %s sc0 sc1" % sr(S_DBG, 2))
        g.i("s_waitcnt vmcnt(0)")
        g.vm = []
        g.label(lab)

    def check_init_flag(self, vt):
        g = self
        lab = g.wave0_begin()
        loop = g.newlabel("L_initpoll")
        g.i("v_mov_b32 %s, 0" % v(vt + 1))
        g.i("s_mov_b32 s%d, 0" % S_SPIN)
        g.label(loop)
        g.i("global_load_dword %s, %s, %s sc1" % (v(vt), v(vt + 1), sr(S_DBG, 2)))
        g.vm.pop()
        g.i("s_waitcnt vmcnt(0)")
        g.i("v_readfirstlane_b32 s%d, %s" % (T0, v(vt)))
        g.i("s_cmp_eq_u32 s%d, 1" % T0)
        g.i("s_cbranch_scc1 %s" % lab)
        g.i("s_add_u32 s%d, s%d, 1" % (S_SPIN, S_SPIN))
        g.i("s_cmp_ge_u32 s%d, 0x%x" % (S_SPIN, SPIN_MAX))
        g.i("s_cbranch_scc1 %s" % lab)
        g.i("s_sleep 1")
        g.i("s_branch %s" % loop)
        g.label(lab)

    def p1(self):
        g = self
        SLOT = 28672
        MISC = 5 * SLOT
        CS = MISC
        ST = MISC + 512
        S_RB, S_CB = S_A, S_B
        S_XO, S_WOFF = S_C, S_D
        g.i("s_lshr_b32 s%d, s%d, 1" % (T0, S_XCD))
        g.i("s_lshl_b32 s%d, s%d, 2" % (T0, T0))
        g.i("s_lshr_b32 s%d, s%d, 3" % (T1, S_SLOT))
        g.i("s_add_u32 s%d, s%d, s%d" % (S_RB, T0, T1))
        g.i("s_and_b32 s%d, s%d, 1" % (T0, S_XCD))
        g.i("s_lshl_b32 s%d, s%d, 3" % (T0, T0))
        g.i("s_and_b32 s%d, s%d, 7" % (T1, S_SLOT))
        g.i("s_add_u32 s%d, s%d, s%d" % (S_CB, T0, T1))
        g.i("s_lshl_b32 s%d, s%d, 17" % (T0, S_RB))
        g.i("s_lshl_b32 s%d, s%d, 15" % (T1, S_W))
        g.i("s_add_u32 s%d, s%d, s%d" % (S_XO, T0, T1))
        g.i("s_mov_b32 s%d, 0" % S_WOFF)
        VXD = 8
        VWD = 12
        VXR = 16
        VWR = 28
        ONES = 31
        XF = [32, 36]
        WF = [40, 52]
        AQ, AK, AV = 64, 80, 96
        S1, S2 = 112, 113
        CSA = 114
        T = 120
        g.i("v_lshrrev_b32 v1, 3, v0")
        g.i("v_lshlrev_b32 v1, 10, v1")
        g.i("v_and_b32 v2, 7, v0")
        g.i("v_lshrrev_b32 v3, 4, v0")
        for q in range(4):
            g.i("v_add_u32 v4, %d, v3" % (4 * (q & 1)))
            g.i("v_xor_b32 v4, v2, v4")
            g.i("v_lshlrev_b32 v4, 4, v4")
            g.i("v_add_u32 v4, v1, v4")
            g.i("v_add_u32 %s, %d, v4" % (v(VXD + q), q * 7168))
        g.i("v_lshrrev_b32 v1, 2, v0")
        g.i("s_lshl_b32 s%d, s%d, 4" % (T0, S_W))
        g.i("v_add_u32 v1, s%d, v1" % T0)
        g.i("v_mul_u32_u24 v1, 3072, v1")
        g.i("v_and_b32 v2, 3, v0")
        g.i("v_lshlrev_b32 v2, 4, v2")
        g.i("s_lshl_b32 s%d, s%d, 6" % (T1, S_CB))
        g.i("v_add3_u32 %s, v1, v2, s%d" % (v(VWD), T1))

        def issue_chunk(c):
            slot = (c % 5) * SLOT
            g.i("s_lshl_b32 s%d, s%d, 12" % (T0, S_W))
            g.i("s_add_u32 m0, s%d, %d" % (T0, slot))
            for q in range(4):
                g.i("buffer_load_dwordx4 %s, %s, s%d offen offset:%d lds" % (v(VXD + q), sr(SRD_X, 4), S_XO, q * 1024), tag=("p1", c))
            g.i("s_add_u32 s%d, s%d, 128" % (S_XO, S_XO))
            g.i("s_mul_i32 s%d, s%d, 3072" % (T0, S_W))
            g.i("s_add_u32 m0, s%d, %d" % (T0, slot + 16384))
            for gi in range(3):
                g.i("buffer_load_dwordx4 %s, %s, s%d offen offset:%d lds" % (v(VWD), sr(SRD_WQ, 4), S_WOFF, gi * 1024), tag=("p1", c))
            g.i("s_add_u32 s%d, s%d, %d" % (S_WOFF, S_WOFF, 64 * 3072))
        for c in range(4):
            issue_chunk(c)
        g.i("v_and_b32 v1, 31, v0")
        g.i("v_lshrrev_b32 v2, 5, v0")
        g.i("v_lshrrev_b32 v3, 1, v1")
        g.i("v_and_b32 v3, 7, v3")
        g.i("v_lshlrev_b32 v4, 7, v1")
        g.i("s_lshl_b32 s%d, s%d, 12" % (T0, S_W))
        g.i("v_add_u32 v4, s%d, v4" % T0)
        for js in range(4):
            g.i("v_add_u32 v5, %d, v2" % (2 * js))
            g.i("v_xor_b32 v5, v5, v3")
            g.i("v_lshlrev_b32 v5, 4, v5")
            g.i("v_add_u32 %s, v4, v5" % v(VXR + js))
            g.i("v_add_u32 %s, %d, %s" % (v(VXR + 4 + js), 2 * SLOT, v(VXR + js)))
            g.i("v_add_u32 %s, %d, %s" % (v(VXR + 8 + js), 4 * SLOT, v(VXR + js)))
        g.i("v_and_b32 v1, 15, v0")
        g.i("v_lshrrev_b32 v1, 2, v1")
        g.i("v_lshlrev_b32 v3, 3, v2")
        g.i("v_add_u32 v1, v1, v3")
        g.i("v_lshlrev_b32 v1, 6, v1")
        g.i("v_bfe_u32 v3, v0, 4, 1")
        g.i("v_lshlrev_b32 v3, 5, v3")
        g.i("v_and_b32 v4, 3, v0")
        g.i("v_lshlrev_b32 v4, 3, v4")
        g.i("v_add3_u32 v1, v1, v3, v4")
        g.i("v_add_u32 %s, 16384, v1" % v(VWR))
        g.i("v_add_u32 %s, %d, %s" % (v(VWR + 1), 2 * SLOT, v(VWR)))
        g.i("v_add_u32 %s, %d, %s" % (v(VWR + 2), 4 * SLOT, v(VWR)))
        g.i("v_mov_b32 %s, 0x3f803f80" % v(ONES))
        g.i("v_mov_b32 %s, 0" % v(S1))
        g.i("v_mov_b32 %s, 0" % v(S2))
        for k in range(3):
            g.i("v_mov_b32 %s, 0" % v(CSA + k))
        g.i("v_lshlrev_b32 v1, 2, v0")
        g.i("v_mov_b32 v2, 0")
        g.i("v_add_u32 v1, %d, v1" % CS)
        g.i("ds_write_b32 v1, v2")
        g.i("ds_write_b32 v1, v2 offset:256")
        g.i("s_waitcnt lgkmcnt(0)")

        def reads(c, js, b):
            st = (c % 5) // 2
            so = ((c % 5) % 2) * SLOT
            g.i("ds_read_b128 %s, %s offset:%d" % (vr(XF[b], 4), v(VXR + 4 * st + js), so))
            for gi in range(3):
                for hh in range(2):
                    g.i("ds_read_b64_tr_b16 %s, %s offset:%d" % (vr(WF[b] + 4 * gi + 2 * hh, 2), v(VWR + st), so + js * 3072 + gi * 1024 + hh * 256))

        first = True
        for c in range(8):
            g.vm_wait(("p1", c))
            g.i("s_barrier")
            if c + 4 < 8:
                issue_chunk(c + 4)
            reads(c, 0, 0)
            for js in range(4):
                b = js & 1
                if js < 3:
                    reads(c, js + 1, 1 - b)
                    g.i("s_waitcnt lgkmcnt(7)")
                else:
                    g.i("s_waitcnt lgkmcnt(0)")
                cq = "0" if first else vr(AQ, 16)
                ck = "0" if first else vr(AK, 16)
                cv = "0" if first else vr(AV, 16)
                first = False
                g.i("v_mfma_f32_32x32x16_bf16 %s, %s, %s, %s" % (vr(AQ, 16), vr(WF[b], 4), vr(XF[b], 4), cq))
                for k in range(4):
                    g.i("v_dot2c_f32_bf16 %s, %s, %s" % (v(S1), v(XF[b] + k), v(ONES)))
                g.i("v_mfma_f32_32x32x16_bf16 %s, %s, %s, %s" % (vr(AK, 16), vr(WF[b] + 4, 4), vr(XF[b], 4), ck))
                for k in range(4):
                    g.i("v_dot2c_f32_bf16 %s, %s, %s" % (v(S2), v(XF[b] + k), v(XF[b] + k)))
                g.i("v_mfma_f32_32x32x16_bf16 %s, %s, %s, %s" % (vr(AV, 16), vr(XF[b], 4), vr(WF[b] + 8, 4), cv))
                lab = g.newlabel("L_cs")
                g.i("s_cmp_lg_u32 s%d, %d" % (S_W, js))
                g.i("s_cbranch_scc1 %s" % lab)
                for gi in range(3):
                    for k in range(4):
                        g.i("v_dot2c_f32_bf16 %s, %s, %s" % (v(CSA + gi), v(WF[b] + 4 * gi + k), v(ONES)))
                g.label(lab)
        g.nop(3)
        g.cross_half(S1, T)
        g.cross_half(S2, T)
        MEAN, RSTD = T + 1, T + 2
        g.i("v_mul_f32 %s, %s, %s" % (v(MEAN), hexf(1.0 / 512), v(S1)))
        g.i("v_mul_f32 %s, %s, %s" % (v(T), hexf(1.0 / 512), v(S2)))
        g.i("v_fma_f32 %s, -%s, %s, %s" % (v(T), v(MEAN), v(MEAN), v(T)))
        g.i("v_max_f32 %s, 0, %s" % (v(T), v(T)))
        g.i("v_add_f32 %s, %s, %s" % (v(T), hexf(1e-5), v(T)))
        g.i("v_rsq_f32 %s, %s" % (v(RSTD), v(T)))
        g.i("v_and_b32 v1, 31, v0")
        g.i("v_lshlrev_b32 v1, 2, v1")
        g.i("s_lshl_b32 s%d, s%d, 8" % (T0, S_W))
        g.i("s_add_u32 s%d, s%d, %d" % (T0, T0, ST))
        g.i("v_add_u32 v2, s%d, v1" % T0)
        g.i("ds_write_b32 v2, %s" % v(RSTD))
        g.i("ds_write_b32 v2, %s offset:128" % v(MEAN))
        g.i("v_add_u32 v3, %d, v1" % CS)
        for gi in range(3):
            g.i("ds_add_f32 v3, %s offset:%d" % (v(CSA + gi), gi * 128))
        g.i("s_waitcnt lgkmcnt(0)")
        g.i("s_barrier")
        CQ, CK, RV, MV, CV = 128, 144, 160, 176, 192
        g.i("v_lshrrev_b32 v4, 5, v0")
        g.i("v_lshlrev_b32 v4, 4, v4")
        g.i("v_add_u32 v5, %d, v4" % CS)
        g.i("v_add_u32 v6, s%d, v4" % T0)
        for i4 in range(4):
            g.i("ds_read_b128 %s, v5 offset:%d" % (vr(CQ + 4 * i4, 4), i4 * 32))
        for i4 in range(4):
            g.i("ds_read_b128 %s, v5 offset:%d" % (vr(CK + 4 * i4, 4), 128 + i4 * 32))
        g.i("ds_read_b32 %s, v3 offset:256" % v(CV))
        for i4 in range(4):
            g.i("ds_read_b128 %s, v6 offset:%d" % (vr(RV + 4 * i4, 4), i4 * 32))
        for i4 in range(4):
            g.i("ds_read_b128 %s, v6 offset:%d" % (vr(MV + 4 * i4, 4), 128 + i4 * 32))
        QS = 0.25 * 1.4426950408889634
        RQ = T + 3
        g.i("v_mul_f32 %s, %s, %s" % (v(RQ), hexf(QS), v(RSTD)))
        PQ, PK, PV = 200, 208, 216
        KA, KB = T + 4, T + 5
        g.i("s_waitcnt lgkmcnt(9)")
        for r in range(16):
            g.i("v_fma_f32 %s, -%s, %s, %s" % (v(AQ + r), v(MEAN), v(CQ + r), v(AQ + r)))
        for r in range(16):
            g.i("v_mul_f32 %s, %s, %s" % (v(AQ + r), v(RQ), v(AQ + r)))
        for r in range(8):
            g.i("v_cvt_pk_bf16_f32 %s, %s, %s" % (v(PQ + r), v(AQ + 2 * r), v(AQ + 2 * r + 1)))
        g.i("s_waitcnt lgkmcnt(0)")
        for r in range(16):
            g.i("v_fma_f32 %s, -%s, %s, %s" % (v(AK + r), v(MEAN), v(CK + r), v(AK + r)))
        for r in range(16):
            g.i("v_mul_f32 %s, %s, %s" % (v(AK + r), v(RSTD), v(AK + r)))
        for r in range(8):
            g.i("v_cvt_pk_bf16_f32 %s, %s, %s" % (v(PK + r), v(AK + 2 * r), v(AK + 2 * r + 1)))
        g.i("v_mul_f32 %s, %s, %s" % (v(KA), v(AK), v(AK)))
        g.i("v_mul_f32 %s, %s, %s" % (v(KB), v(AK + 8), v(AK + 8)))
        for r in range(1, 8):
            g.i("v_fmac_f32 %s, %s, %s" % (v(KA), v(AK + r), v(AK + r)))
            g.i("v_fmac_f32 %s, %s, %s" % (v(KB), v(AK + 8 + r), v(AK + 8 + r)))
        for r in range(16):
            g.i("v_fma_f32 %s, -%s, %s, %s" % (v(AV + r), v(MV + r), v(CV), v(AV + r)))
        for r in range(16):
            g.i("v_mul_f32 %s, %s, %s" % (v(AV + r), v(RV + r), v(AV + r)))
        for r in range(8):
            g.i("v_cvt_pk_bf16_f32 %s, %s, %s" % (v(PV + r), v(AV + 2 * r), v(AV + 2 * r + 1)))
        g.cross_half(KA, T)
        g.cross_half(KB, T)
        g.i("v_cmp_gt_u32 vcc, 32, v0")
        g.i("v_cndmask_b32 %s, %s, %s, vcc" % (v(KA), v(KB), v(KA)))
        for sh in (8, 4, 2, 1):
            g.i("v_max_f32_dpp %s, %s, %s row_ror:%d row_mask:0xf bank_mask:0xf" % (v(KA), v(KA), v(KA), sh))
        g.i("v_mov_b32 %s, %s" % (v(T), v(KA)))
        g.i("v_permlane16_swap_b32 %s, %s" % (v(KA), v(T)))
        g.i("v_max_f32 %s, %s, %s" % (v(KA), v(KA), v(T)))
        S_TILE, S_HA = S_E, S_F
        g.i("s_lshl_b32 s%d, s%d, 2" % (S_TILE, S_RB))
        g.i("s_add_u32 s%d, s%d, s%d" % (S_TILE, S_TILE, S_W))
        g.i("s_lshl_b32 s%d, s%d, 1" % (S_HA, S_CB))
        g.i("v_lshlrev_b32 v1, 4, v0")
        g.i("s_lshl_b32 s%d, s%d, 16" % (T0, S_HA))
        g.i("s_lshl_b32 s%d, s%d, 10" % (T1, S_TILE))
        g.i("s_add_u32 s%d, s%d, s%d" % (T0, T0, T1))
        g.i("s_add_u32 s%d, s%d, 0x%x" % (T0, T0, WS_QF))
        g.i("s_add_u32 s%d, s%d, 0x10000" % (T1, T0))
        g.i("buffer_store_dwordx4 %s, v1, %s, s%d offen sc1" % (vr(PQ, 4), sr(SRD_WS, 4), T0))
        g.i("buffer_store_dwordx4 %s, v1, %s, s%d offen sc1" % (vr(PQ + 4, 4), sr(SRD_WS, 4), T1))
        g.i("s_lshl_b32 s%d, s%d, 17" % (T2, S_HA))
        g.i("s_lshl_b32 s%d, s%d, 11" % (T3, S_TILE))
        g.i("s_add_u32 s%d, s%d, s%d" % (T2, T2, T3))
        g.i("s_add_u32 s%d, s%d, 0x%x" % (T2, T2, WS_KV))
        g.i("s_add_u32 s%d, s%d, 0x20000" % (T3, T2))
        g.i("buffer_store_dwordx4 %s, v1, %s, s%d offen sc1" % (vr(PK, 4), sr(SRD_WS, 4), T2))
        g.i("buffer_store_dwordx4 %s, v1, %s, s%d offen sc1" % (vr(PK + 4, 4), sr(SRD_WS, 4), T3))
        g.i("v_lshrrev_b32 v2, 5, v0")
        g.i("v_lshlrev_b32 v2, 8, v2")
        g.i("v_and_b32 v3, 15, v0")
        g.i("v_lshlrev_b32 v3, 4, v3")
        g.i("v_bfe_u32 v4, v0, 4, 1")
        g.i("v_lshlrev_b32 v4, 17, v4")
        g.i("v_add3_u32 v2, v2, v3, v4")
        g.i("s_add_u32 s%d, s%d, 1024" % (T4, T2))
        g.i("buffer_store_dwordx4 %s, v2, %s, s%d offen sc1" % (vr(PV, 4), sr(SRD_WS, 4), T4))
        g.i("buffer_store_dwordx4 %s, v2, %s, s%d offen offset:512 sc1" % (vr(PV + 4, 4), sr(SRD_WS, 4), T4))
        g.i("v_lshrrev_b32 v3, 5, v0")
        g.i("v_lshlrev_b32 v3, 8, v3")
        g.i("s_lshl_b32 s%d, s%d, 8" % (T5, S_HA))
        g.i("s_lshl_b32 s%d, s%d, 2" % (T6, S_TILE))
        g.i("s_add_u32 s%d, s%d, s%d" % (T5, T5, T6))
        g.i("s_add_u32 s%d, s%d, 0x%x" % (T5, T5, WS_KMAX))
        g.i("s_mov_b32 s%d, 1" % S_EXEC)
        g.i("s_mov_b32 s%d, 1" % (S_EXEC + 1))
        g.i("s_mov_b64 exec, %s" % sr(S_EXEC, 2))
        g.i("buffer_store_dword %s, v3, %s, s%d offen sc1" % (v(KA), sr(SRD_WS, 4), T5))
        g.i("s_mov_b64 exec, -1")
        g.check_init_flag(1)
        g.i("s_lshl_b32 s%d, s%d, 8" % (T7, S_CB))
        g.i("s_add_u32 s%d, s%d, %d" % (T7, T7, WS_CNT + C_B1 * 256))
        g.arrive(T7, 1)

    def p2(self):
        g = self
        RS = 16512
        TS = 2064
        S_HEAD, S_QB, S_KV = S_A, S_B, S_C
        g.i("s_lshl_b32 s%d, s%d, 2" % (T0, S_XCD))
        g.i("s_lshr_b32 s%d, s%d, 3" % (T1, S_SLOT))
        g.i("s_add_u32 s%d, s%d, s%d" % (S_HEAD, T0, T1))
        g.i("s_and_b32 s%d, s%d, 7" % (S_QB, S_SLOT))
        QA, QB = 4, 8
        KF = [12, 16]
        VF = [20, 28]
        SS = [36, 52]
        PK = [68, 76]
        O = [84, 100]
        VK, VVA, VVB, VD = 116, 117, 118, 119
        T = 120
        g.i("v_and_b32 v1, 31, v0")
        g.i("v_lshrrev_b32 v2, 3, v1")
        g.i("v_mul_u32_u24 v2, %d, v2" % RS)
        g.i("v_and_b32 v3, 7, v1")
        g.i("v_mul_u32_u24 v3, %d, v3" % TS)
        g.i("v_add3_u32 v2, v2, v3, 0")
        g.i("v_add_u32 v2, 2048, v2")
        for k in range(4):
            g.i("v_mov_b32 %s, 0x3f803f80" % v(12 + k))
        g.i("ds_write_b128 v2, %s" % vr(12, 4))
        g.i("v_lshlrev_b32 %s, 4, v0" % v(VK))
        g.i("v_lshlrev_b32 %s, 4, v0" % v(VD))
        g.i("v_and_b32 v1, 31, v0")
        g.i("v_lshrrev_b32 v2, 5, v0")
        g.i("v_lshlrev_b32 v2, 8, v2")
        g.i("v_lshlrev_b32 v3, 4, v1")
        g.i("v_add3_u32 v2, v2, v3, 0")
        g.i("v_add_u32 v2, 1024, v2")
        g.i("v_add_u32 v3, 512, v2")
        g.i("v_mov_b32 v4, 2048")
        g.i("v_cmp_gt_u32 vcc, 16, v1")
        g.i("v_cndmask_b32 %s, v4, v2, vcc" % v(VVA))
        g.i("v_cndmask_b32 %s, v4, v3, vcc" % v(VVB))
        g.i("s_lshr_b32 s%d, s%d, 1" % (T7, S_HEAD))
        g.i("s_lshl_b32 s%d, s%d, 8" % (T7, T7))
        g.i("s_add_u32 s%d, s%d, %d" % (T7, T7, WS_CNT + C_B1 * 256))
        g.i("s_waitcnt lgkmcnt(0)")
        g.wait_cnt(T7, 16, 1)
        g.i("s_lshl_b32 s%d, s%d, 17" % (T0, S_HEAD))
        g.i("s_lshl_b32 s%d, s%d, 12" % (T1, S_W))
        g.i("s_add_u32 s%d, s%d, s%d" % (S_KV, T0, T1))
        g.i("s_add_u32 s%d, s%d, 0x%x" % (S_KV, S_KV, WS_KV))
        S_M0B = S_D
        g.i("s_mul_i32 s%d, s%d, %d" % (S_M0B, S_W, 2 * TS))

        def issue_chunk(c):
            slot = (c & 3) * RS
            g.i("s_add_u32 m0, s%d, %d" % (S_M0B, slot))
            g.i("buffer_load_dwordx4 %s, %s, s%d offen sc1 lds" % (v(VD), sr(SRD_WS, 4), S_KV), tag=("kv", c))
            g.i("buffer_load_dwordx4 %s, %s, s%d offen offset:1024 sc1 lds" % (v(VD), sr(SRD_WS, 4), S_KV), tag=("kv", c))
            g.i("s_add_u32 m0, s%d, %d" % (S_M0B, slot + 16))
            g.i("buffer_load_dwordx4 %s, %s, s%d offen offset:2048 sc1 lds" % (v(VD), sr(SRD_WS, 4), S_KV), tag=("kv", c))
            g.i("buffer_load_dwordx4 %s, %s, s%d offen offset:3072 sc1 lds" % (v(VD), sr(SRD_WS, 4), S_KV), tag=("kv", c))
            g.i("s_add_u32 s%d, s%d, 16384" % (S_KV, S_KV))
        g.i("s_lshl_b32 s%d, s%d, 16" % (T0, S_HEAD))
        g.i("s_lshl_b32 s%d, s%d, 13" % (T1, S_QB))
        g.i("s_add_u32 s%d, s%d, s%d" % (T0, T0, T1))
        g.i("s_lshl_b32 s%d, s%d, 11" % (T1, S_W))
        g.i("s_add_u32 s%d, s%d, s%d" % (T0, T0, T1))
        g.i("s_add_u32 s%d, s%d, 0x%x" % (T0, T0, WS_QF))
        g.i("buffer_load_dwordx4 %s, %s, %s, s%d offen sc1" % (vr(QA, 4), v(VD), sr(SRD_WS, 4), T0), tag="q")
        g.i("buffer_load_dwordx4 %s, %s, %s, s%d offen offset:1024 sc1" % (vr(QB, 4), v(VD), sr(SRD_WS, 4), T0), tag="q")
        g.i("s_lshl_b32 s%d, s%d, 8" % (T1, S_HEAD))
        g.i("s_add_u32 s%d, s%d, 0x%x" % (T1, T1, WS_KMAX))
        g.i("v_lshlrev_b32 v1, 2, v0")
        g.i("buffer_load_dword %s, v1, %s, s%d offen sc1" % (v(T), sr(SRD_WS, 4), T1), tag="q")
        for c in range(3):
            issue_chunk(c)
        g.vm_wait("q")
        g.vm_wait(("kv", 1))
        g.i("s_barrier")
        issue_chunk(3)

        def off(Tn):
            return ((Tn >> 3) & 3) * RS + (Tn & 7) * TS

        def mfma(d, am, bm, c):
            g.i("v_mfma_f32_32x32x16_bf16 %s, %s, %s, %s" % (vr(d, 16), vr(am, 4), vr(bm, 4), c))
        g.i("ds_read_b128 %s, %s offset:%d" % (vr(KF[0], 4), v(VK), off(0)))
        g.i("s_waitcnt lgkmcnt(0)")
        mfma(SS[0], KF[0], QA, "0")
        o_started = [False, False]

        def pv(which, vreg, half):
            c = vr(O[which], 16) if (o_started[which] or half == 1) else "0"
            mfma(O[which], vreg + 4 * half, PK[which] + 4 * half, c)
            if half == 1:
                o_started[which] = True

        for Tn in range(64):
            for which in range(2):
                cur, nxt = SS[which], SS[1 - which]
                pkc = PK[which]
                if which == 0 and (Tn & 7) == 0 and Tn > 0:
                    c = Tn >> 3
                    if c + 1 < 8:
                        g.vm_wait(("kv", c + 1))
                    g.i("s_barrier")
                    if c + 3 < 8:
                        issue_chunk(c + 3)
                ex = ["v_exp_f32 %s, %s" % (v(cur + k), v(cur + k)) for k in range(16)]
                cv = ["v_cvt_pk_bf16_f32 %s, %s, %s" % (v(pkc + k), v(cur + 2 * k), v(cur + 2 * k + 1)) for k in range(8)]
                if which == 0:
                    mfma(nxt, KF[Tn & 1], QB, "0")
                    mem = []
                    if Tn + 1 < 64:
                        mem.append("ds_read_b128 %s, %s offset:%d" % (vr(KF[(Tn + 1) & 1], 4), v(VK), off(Tn + 1)))
                    mem.append("ds_read_b128 %s, %s offset:%d" % (vr(VF[Tn & 1], 4), v(VVA), off(Tn)))
                    mem.append("ds_read_b128 %s, %s offset:%d" % (vr(VF[Tn & 1] + 4, 4), v(VVB), off(Tn)))
                    for m_ in mem:
                        g.i(m_)
                    do_pv = Tn > 0
                    pvw, pvv = 1, VF[(Tn - 1) & 1]
                else:
                    g.i("s_waitcnt lgkmcnt(0)")
                    if Tn + 1 < 64:
                        mfma(nxt, KF[(Tn + 1) & 1], QA, "0")
                    do_pv = True
                    pvw, pvv = 0, VF[Tn & 1]
                for k in (0, 1, 2, 3, 4):
                    g.i(ex[k])
                g.i(cv[0]); g.i(cv[1])
                if do_pv:
                    pv(pvw, pvv, 0)
                for k in (5, 6, 7, 8, 9):
                    g.i(ex[k])
                g.i(cv[2]); g.i(cv[3])
                if do_pv:
                    pv(pvw, pvv, 1)
                g.i(ex[10]); g.i(ex[11]); g.i(cv[4]); g.i(ex[12]); g.i(ex[13]); g.i(cv[5])
                g.i(ex[14]); g.i(ex[15]); g.i(cv[6]); g.i(cv[7])
        pv(1, VF[63 & 1], 0)
        pv(1, VF[63 & 1], 1)
        g.i("s_lshl_b32 s%d, s%d, 3" % (T0, S_QB))
        g.i("s_lshl_b32 s%d, s%d, 1" % (T1, S_W))
        g.i("s_add_u32 s%d, s%d, s%d" % (T0, T0, T1))
        g.i("s_lshl_b32 s%d, s%d, 5" % (T0, T0))
        g.i("s_add_u32 s%d, s%d, s%d" % (T0, T0, S_HEAD))
        g.i("s_lshl_b32 s%d, s%d, 10" % (T0, T0))
        g.i("s_add_u32 s%d, s%d, 0x%x" % (T0, T0, WS_OF))
        g.i("s_add_u32 s%d, s%d, 32768" % (T1, T0))
        for which in range(2):
            o = O[which]
            g.i("v_rcp_f32 %s, %s" % (v(T), v(o + 8)))
            for r in range(8):
                g.i("v_mul_f32 %s, %s, %s" % (v(o + r), v(T), v(o + r)))
            for r in range(4):
                g.i("v_cvt_pk_bf16_f32 %s, %s, %s" % (v(PK[which] + r), v(o + 2 * r), v(o + 2 * r + 1)))
            g.i("buffer_store_dwordx4 %s, %s, %s, s%d offen sc1" % (vr(PK[which], 4), v(VD), sr(SRD_WS, 4), T0 + which))
        g.i("s_lshl_b32 s%d, s%d, 8" % (T7, S_QB))
        g.i("s_add_u32 s%d, s%d, %d" % (T7, T7, WS_CNT + C_B2 * 256))
        g.arrive(T7, 1)

    def tile35(self):
        g = self
        g.i("s_and_b32 s%d, s%d, 1" % (T0, S_XCD))
        g.i("s_lshl_b32 s%d, s%d, 2" % (T0, T0))
        g.i("s_and_b32 s%d, s%d, 3" % (T1, S_SLOT))
        g.i("s_add_u32 s%d, s%d, s%d" % (S_DB, T0, T1))
        g.i("s_lshr_b32 s%d, s%d, 1" % (T0, S_XCD))
        g.i("s_lshl_b32 s%d, s%d, 3" % (T0, T0))
        g.i("s_lshr_b32 s%d, s%d, 2" % (T1, S_SLOT))
        g.i("s_add_u32 s%d, s%d, s%d" % (S_SB, T0, T1))

    def tr_addr(self, dst, row_expr_h_shift, base):
        g = self
        g.i("v_lshrrev_b32 v1, 5, v0")
        g.i("v_lshlrev_b32 v1, %d, v1" % row_expr_h_shift)
        g.i("v_and_b32 v2, 15, v0")
        g.i("v_lshrrev_b32 v2, 2, v2")
        g.i("v_add_u32 v1, v1, v2")
        g.i("v_lshlrev_b32 v1, 7, v1")
        g.i("v_bfe_u32 v2, v0, 4, 1")
        g.i("v_lshlrev_b32 v2, 1, v2")
        g.i("v_bfe_u32 v3, v0, 1, 1")
        g.i("v_add_u32 v2, v2, v3")
        g.i("v_bfe_u32 v3, v0, 3, 1")
        g.i("v_lshlrev_b32 v3, 2, v3")
        g.i("v_xor_b32 v2, v2, v3")
        g.i("v_lshlrev_b32 v2, 4, v2")
        g.i("v_and_b32 v3, 1, v0")
        g.i("v_lshlrev_b32 v3, 3, v3")
        g.i("v_add3_u32 v1, v1, v2, v3")
        if isinstance(base, int):
            g.i("v_add_u32 %s, %d, v1" % (v(dst), base))
        else:
            g.i("v_add_u32 %s, %s, v1" % (v(dst), base))
        g.i("v_xor_b32 %s, 64, %s" % (v(dst + 1), v(dst)))

    def dma_rows_voff(self, dst, pitch, colbytes_sgpr):
        g = self
        g.i("v_lshrrev_b32 v1, 3, v0")
        g.i("v_mul_u32_u24 v1, %d, v1" % pitch)
        g.i("v_and_b32 v2, 7, v0")
        g.i("v_bfe_u32 v3, v0, 4, 1")
        g.i("v_lshlrev_b32 v3, 2, v3")
        g.i("v_xor_b32 v2, v2, v3")
        g.i("v_lshlrev_b32 v2, 4, v2")
        g.i("v_add3_u32 %s, v1, v2, s%d" % (v(dst), colbytes_sgpr))

    HREG = 248

    def p3(self):
        g = self
        g.tile35()
        WOB = 66560
        S_ST, S_KH = S_A, S_B
        g.i("s_lshr_b32 s%d, s%d, 1" % (S_ST, S_W))
        g.i("s_and_b32 s%d, s%d, 1" % (S_KH, S_W))
        OF = 8
        ACC = [72, 88]
        WF = [104, 112]
        VD4 = 120
        VTR = 124
        VL16 = 126
        XR = 128
        T = 140
        g.i("s_lshl_b32 s%d, s%d, 7" % (T0, S_DB))
        g.dma_rows_voff(VD4, 1024, T0)
        for q in range(1, 4):
            g.i("v_add_u32 %s, %d, %s" % (v(VD4 + q), q * 7168, v(VD4)))
        g.i("s_lshl_b32 s%d, s%d, 17" % (S_C, S_W))
        g.i("s_lshl_b32 s%d, s%d, 14" % (S_D, S_W))
        g.i("s_add_u32 s%d, s%d, %d" % (S_D, S_D, WOB))
        for grp in range(4):
            g.i("s_add_u32 m0, s%d, %d" % (S_D, grp * 4096))
            for q in range(4):
                g.i("buffer_load_dwordx4 %s, %s, s%d offen offset:%d lds" % (v(VD4 + q), sr(SRD_WO, 4), S_C, q * 1024), tag="wo")
            g.i("s_add_u32 s%d, s%d, 32768" % (S_C, S_C))
        g.i("v_and_b32 v1, 31, v0")
        g.i("v_lshlrev_b32 v1, 10, v1")
        g.i("v_lshrrev_b32 v2, 5, v0")
        g.i("v_lshlrev_b32 v2, 3, v2")
        g.i("v_add_u32 %s, v1, v2" % v(T))
        g.i("s_lshl_b32 s%d, s%d, 16" % (T0, S_SB))
        g.i("s_lshl_b32 s%d, s%d, 15" % (T1, S_ST))
        g.i("s_add_u32 s%d, s%d, s%d" % (T0, T0, T1))
        g.i("s_lshl_b32 s%d, s%d, 7" % (T1, S_DB))
        g.i("s_add_u32 s%d, s%d, s%d" % (T0, T0, T1))
        g.i("s_lshl_b32 s%d, s%d, 6" % (T1, S_KH))
        g.i("s_add_u32 s%d, s%d, s%d" % (S_E, T0, T1))
        for i4 in range(4):
            g.i("buffer_load_dwordx2 %s, %s, %s, s%d offen offset:%d" % (vr(XR + 2 * i4, 2), v(T), sr(SRD_X, 4), S_E, 16 * i4), tag="x")
        g.tr_addr(VTR, 2, WOB)
        g.i("v_lshlrev_b32 %s, 4, v0" % v(VL16))
        g.i("s_lshr_b32 s%d, s%d, 2" % (T7, S_SB))
        g.i("s_lshl_b32 s%d, s%d, 8" % (T7, T7))
        g.i("s_add_u32 s%d, s%d, %d" % (T7, T7, WS_CNT + C_B2 * 256))
        g.vm_wait("x")
        g.wait_cnt(T7, 32, 1)
        g.i("s_lshl_b32 s%d, s%d, 1" % (T0, S_SB))
        g.i("s_add_u32 s%d, s%d, s%d" % (T0, T0, S_ST))
        g.i("s_lshl_b32 s%d, s%d, 15" % (T0, T0))
        g.i("s_lshl_b32 s%d, s%d, 14" % (T1, S_KH))
        g.i("s_add_u32 s%d, s%d, s%d" % (T0, T0, T1))
        g.i("s_add_u32 s%d, s%d, 0x%x" % (T0, T0, WS_OF))
        for k in range(16):
            if k and k % 4 == 0:
                g.i("s_add_u32 s%d, s%d, 4096" % (T0, T0))
            g.i("buffer_load_dwordx4 %s, %s, %s, s%d offen offset:%d sc1" % (vr(OF + 4 * k, 4), v(VL16), sr(SRD_WS, 4), T0, (k % 4) * 1024), tag=("of", k))
        g.i("s_lshl_b32 s%d, s%d, 15" % (T1, S_KH))
        g.i("v_add_u32 %s, s%d, %s" % (v(VTR), T1, v(VTR)))
        g.i("v_add_u32 %s, s%d, %s" % (v(VTR + 1), T1, v(VTR + 1)))

        def wreads(k, b):
            for dt in range(2):
                for hh in range(2):
                    g.i("ds_read_b64_tr_b16 %s, %s offset:%d" % (vr(WF[b] + 4 * dt + 2 * hh, 2), v(VTR + dt), k * 2048 + hh * 1024))
        wreads(0, 0)
        for k in range(16):
            b = k & 1
            if k < 15:
                wreads(k + 1, 1 - b)
                g.i("s_waitcnt lgkmcnt(4)")
            else:
                g.i("s_waitcnt lgkmcnt(0)")
            g.vm_wait(("of", k))
            for dt in range(2):
                c = "0" if k == 0 else vr(ACC[dt], 16)
                g.i("v_mfma_f32_32x32x16_bf16 %s, %s, %s, %s" % (vr(ACC[dt], 16), vr(WF[b] + 4 * dt, 4), vr(OF + 4 * k, 4), c))
        g.i("s_xor_b32 s%d, s%d, 1" % (T0, S_W))
        g.i("s_lshl_b32 s%d, s%d, 12" % (T0, T0))
        g.i("v_add_u32 v1, s%d, %s" % (T0, v(VL16)))
        g.i("s_lshl_b32 s%d, s%d, 12" % (T0, S_W))
        g.i("v_add_u32 v2, s%d, %s" % (T0, v(VL16)))
        labx = g.newlabel("L_kh1")
        labe = g.newlabel("L_khe")
        g.fence()
        g.i("s_cmp_eq_u32 s%d, 1" % S_KH)
        g.i("s_cbranch_scc1 %s" % labx)
        for i4 in range(4):
            g.i("ds_write_b128 v1, %s offset:%d" % (vr(ACC[1] + 4 * i4, 4), i4 * 1024))
        g.i("s_branch %s" % labe)
        g.label(labx)
        for i4 in range(4):
            g.i("ds_write_b128 v1, %s offset:%d" % (vr(ACC[0] + 4 * i4, 4), i4 * 1024))
        for r in range(16):
            g.i("v_mov_b32 %s, %s" % (v(ACC[0] + r), v(ACC[1] + r)))
        g.label(labe)
        g.i("s_waitcnt lgkmcnt(0)")
        g.i("s_barrier")
        RX = ACC[1]
        for i4 in range(4):
            g.i("ds_read_b128 %s, v2 offset:%d" % (vr(RX + 4 * i4, 4), i4 * 1024))
        g.i("s_waitcnt lgkmcnt(0)")
        A0 = ACC[0]
        for r in range(16):
            g.i("v_add_f32 %s, %s, %s" % (v(A0 + r), v(A0 + r), v(RX + r)))
        for r in range(8):
            g.i("v_lshlrev_b32 %s, 16, %s" % (v(RX + 2 * r), v(XR + r)))
            g.i("v_and_b32 %s, 0xffff0000, %s" % (v(RX + 2 * r + 1), v(XR + r)))
        for r in range(16):
            g.i("v_add_f32 %s, %s, %s" % (v(A0 + r), v(A0 + r), v(RX + r)))
        H = self.HREG
        for r in range(8):
            g.i("v_cvt_pk_bf16_f32 %s, %s, %s" % (v(H + r), v(A0 + 2 * r), v(A0 + 2 * r + 1)))
        for r in range(8):
            g.i("v_lshlrev_b32 %s, 16, %s" % (v(A0 + 2 * r), v(H + r)))
            g.i("v_and_b32 %s, 0xffff0000, %s" % (v(A0 + 2 * r + 1), v(H + r)))
        S1, S2 = 104, 105
        g.i("v_add_f32 %s, %s, %s" % (v(S1), v(A0), v(A0 + 1)))
        g.i("v_mul_f32 %s, %s, %s" % (v(S2), v(A0), v(A0)))
        g.i("v_fmac_f32 %s, %s, %s" % (v(S2), v(A0 + 1), v(A0 + 1)))
        for r in range(2, 16):
            g.i("v_add_f32 %s, %s, %s" % (v(S1), v(S1), v(A0 + r)))
            g.i("v_fmac_f32 %s, %s, %s" % (v(S2), v(A0 + r), v(A0 + r)))
        g.cross_half(S1, T + 1)
        g.cross_half(S2, T + 1)
        g.i("s_lshl_b32 s%d, s%d, 13" % (T0, S_SB))
        g.i("s_lshl_b32 s%d, s%d, 8" % (T1, S_ST))
        g.i("s_add_u32 s%d, s%d, s%d" % (T0, T0, T1))
        g.i("s_add_u32 s%d, s%d, 0x%x" % (S_F, T0, WS_STATS))
        g.i("s_lshl_b32 s%d, s%d, 1" % (T1, S_DB))
        g.i("s_add_u32 s%d, s%d, s%d" % (T1, T1, S_KH))
        g.i("s_lshl_b32 s%d, s%d, 9" % (T1, T1))
        g.i("s_add_u32 s%d, s%d, s%d" % (T1, T1, S_F))
        g.i("v_and_b32 v1, 31, v0")
        g.i("v_lshlrev_b32 v1, 3, v1")
        g.i("s_mov_b32 s%d, -1" % S_EXEC)
        g.i("s_mov_b32 s%d, 0" % (S_EXEC + 1))
        g.i("s_mov_b64 exec, %s" % sr(S_EXEC, 2))
        g.i("buffer_store_dwordx2 %s, v1, %s, s%d offen sc1" % (vr(S1, 2), sr(SRD_WS, 4), T1))
        g.i("s_mov_b64 exec, -1")
        g.i("s_lshl_b32 s%d, s%d, 8" % (T7, S_SB))
        g.i("s_add_u32 s%d, s%d, %d" % (T7, T7, WS_CNT + C_B3 * 256))
        g.arrive(T7, 2)
        g.wait_cnt(T7, 8, 2)
        g.i("v_lshrrev_b32 v2, 5, v0")
        g.i("v_lshlrev_b32 v2, 12, v2")
        g.i("v_add_u32 v1, v1, v2")
        G0 = 8
        for k in range(8):
            g.i("buffer_load_dwordx2 %s, v1, %s, s%d offen offset:%d sc1" % (vr(G0 + 2 * k, 2), sr(SRD_WS, 4), S_F, k * 512), tag="st")
        g.vm_wait("st")
        g.i("v_add_f32 %s, %s, %s" % (v(S1), v(G0), v(G0 + 2)))
        g.i("v_add_f32 %s, %s, %s" % (v(S2), v(G0 + 1), v(G0 + 3)))
        for k in range(2, 8):
            g.i("v_add_f32 %s, %s, %s" % (v(S1), v(S1), v(G0 + 2 * k)))
            g.i("v_add_f32 %s, %s, %s" % (v(S2), v(S2), v(G0 + 2 * k + 1)))
        g.cross_half(S1, T + 1)
        g.cross_half(S2, T + 1)
        MEAN, VAR, R1, RR = T + 2, T + 3, T + 4, T + 5
        g.i("v_mul_f32 %s, %s, %s" % (v(MEAN), hexf(1.0 / 512), v(S1)))
        g.i("v_mul_f32 %s, %s, %s" % (v(VAR), hexf(1.0 / 512), v(S2)))
        g.i("v_fma_f32 %s, -%s, %s, %s" % (v(VAR), v(MEAN), v(MEAN), v(VAR)))
        g.i("v_max_f32 %s, 0, %s" % (v(VAR), v(VAR)))
        g.i("v_add_f32 %s, %s, %s" % (v(R1), hexf(1e-5), v(VAR)))
        g.i("v_rsq_f32 %s, %s" % (v(R1), v(R1)))
        g.i("v_mul_f32 %s, %s, %s" % (v(RR), v(R1), v(R1)))
        g.i("v_mul_f32 %s, %s, %s" % (v(RR), v(RR), v(VAR)))
        g.i("v_add_f32 %s, %s, %s" % (v(RR), hexf(1e-5), v(RR)))
        g.i("v_rsq_f32 %s, %s" % (v(RR), v(RR)))
        g.i("v_mul_f32 %s, %s, %s" % (v(RR), v(RR), v(R1)))
        for r in range(16):
            g.i("v_sub_f32 %s, %s, %s" % (v(A0 + r), v(A0 + r), v(MEAN)))
        for r in range(16):
            g.i("v_mul_f32 %s, %s, %s" % (v(A0 + r), v(RR), v(A0 + r)))
        PKD = 24
        for r in range(8):
            g.i("v_cvt_pk_bf16_f32 %s, %s, %s" % (v(PKD + r), v(A0 + 2 * r), v(A0 + 2 * r + 1)))
        g.i("s_lshl_b32 s%d, s%d, 11" % (T0, S_W))
        g.i("s_add_u32 s%d, s%d, 16384" % (T0, T0))
        g.i("v_and_b32 v1, 31, v0")
        g.i("v_lshlrev_b32 v1, 6, v1")
        g.i("v_lshrrev_b32 v2, 5, v0")
        g.i("v_lshlrev_b32 v3, 3, v2")
        g.i("v_add3_u32 v1, v1, v3, s%d" % T0)
        for i4 in range(4):
            g.i("ds_write_b64 v1, %s offset:%d" % (vr(PKD + 2 * i4, 2), 16 * i4))
        g.i("v_lshlrev_b32 v2, 3, v2")
        g.i("v_and_b32 v3, 15, v0")
        g.i("v_lshrrev_b32 v3, 2, v3")
        g.i("v_add_u32 v2, v2, v3")
        g.i("v_lshlrev_b32 v2, 6, v2")
        g.i("v_bfe_u32 v3, v0, 4, 1")
        g.i("v_lshlrev_b32 v3, 5, v3")
        g.i("v_and_b32 v4, 3, v0")
        g.i("v_lshlrev_b32 v4, 3, v4")
        g.i("v_add3_u32 v2, v2, v3, v4")
        g.i("v_add_u32 v2, s%d, v2" % T0)
        g.i("s_waitcnt lgkmcnt(0)")
        FR = 32
        for j in range(2):
            for hh in range(2):
                g.i("ds_read_b64_tr_b16 %s, v2 offset:%d" % (vr(FR + 4 * j + 2 * hh, 2), j * 1024 + hh * 256))
        g.i("s_lshl_b32 s%d, s%d, 1" % (T0, S_DB))
        g.i("s_add_u32 s%d, s%d, s%d" % (T0, T0, S_KH))
        g.i("s_lshl_b32 s%d, s%d, 17" % (T0, T0))
        g.i("s_lshl_b32 s%d, s%d, 12" % (T1, S_SB))
        g.i("s_add_u32 s%d, s%d, s%d" % (T0, T0, T1))
        g.i("s_lshl_b32 s%d, s%d, 11" % (T1, S_ST))
        g.i("s_add_u32 s%d, s%d, s%d" % (T0, T0, T1))
        g.i("s_add_u32 s%d, s%d, 0x%x" % (T0, T0, WS_HT))
        g.i("s_waitcnt lgkmcnt(0)")
        for j in range(2):
            g.i("buffer_store_dwordx4 %s, %s, %s, s%d offen offset:%d sc1" % (vr(FR + 4 * j, 4), v(VL16), sr(SRD_WS, 4), T0, j * 1024))
        g.i("s_lshl_b32 s%d, s%d, 8" % (T7, S_DB))
        g.i("s_add_u32 s%d, s%d, %d" % (T7, T7, WS_CNT + C_B4 * 256))
        g.arrive(T7, 2)
        g.i("s_mov_b32 s%d, s%d" % (S_CONST, S_E))

    def gemm_loop(self, nk, srd_w, pitch, s_woff, s_act0, s_act1, second_rows, w_is_a, name):
        g = self
        R = 8
        ACT = 128
        WF = [192, 200]
        VD = [208, 209]
        VTR = 210
        VL16 = 212
        ring = self.newlabel("ring")
        g.i("s_lshl_b32 s%d, s%d, 14" % (S_F, S_W))
        g.tr_addr(VTR, second_rows[0], "s%d" % S_F)
        g.i("v_add_u32 %s, %d, %s" % (v(VD[1]), 8 * pitch - 1024, v(VD[0])))
        g.i("v_lshlrev_b32 %s, 4, v0" % v(VL16))

        def issue(j):
            sl = j % R
            g.i("s_add_u32 m0, s%d, %d" % (S_F, sl * 2048))
            g.i("buffer_load_dwordx4 %s, %s, s%d offen lds" % (v(VD[0]), sr(srd_w, 4), s_woff), tag=(name, j))
            g.i("buffer_load_dwordx4 %s, %s, s%d offen offset:1024 lds" % (v(VD[1]), sr(srd_w, 4), s_woff), tag=(name, j))
            g.i("s_add_u32 s%d, s%d, %d" % (s_woff, s_woff, 16 * pitch))
            q = j % 4
            for t in range(2):
                g.i("buffer_load_dwordx4 %s, %s, %s, s%d offen offset:%d sc1" % (vr(ACT + 8 * sl + 4 * t, 4), v(VL16), sr(SRD_WS, 4), (s_act0, s_act1)[t], q * 1024), tag=(name, j))
            if q == 3:
                g.i("s_add_u32 s%d, s%d, 4096" % (s_act0, s_act0))
                g.i("s_add_u32 s%d, s%d, 4096" % (s_act1, s_act1))

        def wreads(j):
            b = j & 1
            sl = j % R
            for t in range(2):
                for hh in range(2):
                    g.i("ds_read_b64_tr_b16 %s, %s offset:%d" % (vr(WF[b] + 4 * t + 2 * hh, 2), v(VTR + t), sl * 2048 + hh * second_rows[1]))
        return issue, wreads, ACT, WF, R

    def run_gemm(self, nk, issue, wreads, ACT, WF, R, w_is_a, name):
        g = self
        for j in range(min(R, nk)):
            issue(j)
        g.vm_wait((name, 0))
        wreads(0)
        for j in range(nk):
            b = j & 1
            if j + 1 < nk:
                g.vm_wait((name, j + 1))
                wreads(j + 1)
                g.i("s_waitcnt lgkmcnt(4)")
            else:
                g.i("s_waitcnt lgkmcnt(0)")
            sl = j % R
            for wt in range(2):
                for at in range(2):
                    acc = 64 + 16 * (2 * wt + at) if w_is_a else 64 + 16 * (2 * wt + at)
                    c = "0" if j == 0 else vr(acc, 16)
                    wreg = vr(WF[b] + 4 * wt, 4)
                    areg = vr(ACT + 8 * sl + 4 * at, 4)
                    if w_is_a:
                        g.i("v_mfma_f32_32x32x16_bf16 %s, %s, %s, %s" % (vr(acc, 16), wreg, areg, c))
                    else:
                        g.i("v_mfma_f32_32x32x16_bf16 %s, %s, %s, %s" % (vr(acc, 16), areg, wreg, c))
            if j + R < nk:
                issue(j + R)

    def reduce4(self):
        g = self
        SCR = 65536
        VL16 = 212
        g.fence()
        done = g.newlabel("L_red")
        for w in range(4):
            nxt = g.newlabel("L_rw")
            g.i("s_cmp_lg_u32 s%d, %d" % (S_W, w))
            g.i("s_cbranch_scc1 %s" % nxt)
            for d in range(4):
                if d == w:
                    continue
                sl = (w - d - 1) & 3
                base = SCR + d * 12288 + sl * 4096
                g.i("v_add_u32 v1, %d, %s" % (base, v(VL16)))
                for i4 in range(4):
                    g.i("ds_write_b128 v1, %s offset:%d" % (vr(64 + 16 * d + 4 * i4, 4), i4 * 1024))
            if w != 0:
                for r in range(16):
                    g.i("v_mov_b32 %s, %s" % (v(64 + r), v(64 + 16 * w + r)))
            g.i("s_branch %s" % done)
            g.label(nxt)
        g.label(done)
        g.i("s_waitcnt lgkmcnt(0)")
        g.i("s_barrier")
        g.i("s_mul_i32 s%d, s%d, 12288" % (T0, S_W))
        g.i("s_add_u32 s%d, s%d, %d" % (T0, T0, SCR))
        g.i("v_add_u32 v1, s%d, %s" % (T0, v(VL16)))
        for sl in range(3):
            for i4 in range(4):
                g.i("ds_read_b128 %s, v1 offset:%d" % (vr(80 + 16 * sl + 4 * i4, 4), sl * 4096 + i4 * 1024))
        g.i("s_waitcnt lgkmcnt(0)")
        for r in range(16):
            g.i("v_add_f32 %s, %s, %s" % (v(80 + r), v(80 + r), v(96 + r)))
            g.i("v_add_f32 %s, %s, %s" % (v(64 + r), v(64 + r), v(112 + r)))
        for r in range(16):
            g.i("v_add_f32 %s, %s, %s" % (v(64 + r), v(64 + r), v(80 + r)))

    def p4(self):
        g = self
        skip = "L_p4_skip"
        g.i("s_cmp_ge_u32 s%d, 22" % S_SLOT)
        g.i("s_cbranch_scc1 %s" % skip)
        S_DB4, S_FB4 = S_A, S_B
        g.i("s_and_b32 s%d, s%d, 3" % (T0, S_XCD))
        g.i("s_lshl_b32 s%d, s%d, 1" % (T0, T0))
        g.i("s_and_b32 s%d, s%d, 1" % (T1, S_SLOT))
        g.i("s_add_u32 s%d, s%d, s%d" % (S_DB4, T0, T1))
        g.i("s_lshr_b32 s%d, s%d, 2" % (T0, S_XCD))
        g.i("s_mul_i32 s%d, s%d, 11" % (T0, T0))
        g.i("s_lshr_b32 s%d, s%d, 1" % (T1, S_SLOT))
        g.i("s_add_u32 s%d, s%d, s%d" % (S_FB4, T0, T1))
        B1 = 216
        g.i("s_lshr_b32 s%d, s%d, 1" % (T0, S_W))
        g.i("s_lshl_b32 s%d, s%d, 6" % (T0, T0))
        g.i("s_lshl_b32 s%d, s%d, 7" % (T1, S_FB4))
        g.i("s_add_u32 s%d, s%d, s%d" % (T0, T0, T1))
        g.i("v_lshrrev_b32 v1, 5, v0")
        g.i("v_lshlrev_b32 v1, 3, v1")
        for i4 in range(4):
            g.i("buffer_load_dwordx2 %s, v1, %s, s%d offen offset:%d" % (vr(B1 + 2 * i4, 2), sr(SRD_B1, 4), T0, 16 * i4), tag="b1")
        g.i("s_lshl_b32 s%d, s%d, 7" % (T0, S_FB4))
        g.dma_rows_voff(208, 2752, T0)
        S_WOFF, S_A0, S_A1 = S_C, S_D, S_E
        g.i("s_mul_i32 s%d, s%d, %d" % (S_WOFF, S_W, 512 * 2752))
        g.i("s_lshl_b32 s%d, s%d, 18" % (T0, S_DB4))
        g.i("s_lshl_b32 s%d, s%d, 15" % (T1, S_W))
        g.i("s_add_u32 s%d, s%d, s%d" % (T0, T0, T1))
        g.i("s_add_u32 s%d, s%d, 0x%x" % (S_A0, T0, WS_HT))
        g.i("s_add_u32 s%d, s%d, 0x20000" % (S_A1, S_A0))
        issue, wreads, ACT, WF, R = g.gemm_loop(32, SRD_W1, 2752, S_WOFF, S_A0, S_A1, (3, 512), True, "p4")
        g.i("s_lshl_b32 s%d, s%d, 8" % (T7, S_DB4))
        g.i("s_add_u32 s%d, s%d, %d" % (T7, T7, WS_CNT + C_B4 * 256))
        g.vm_wait("b1")
        g.wait_cnt(T7, 32, 1)
        g.run_gemm(32, issue, wreads, ACT, WF, R, True, "p4")
        g.reduce4()
        for r in range(8):
            g.i("v_lshlrev_b32 %s, 16, %s" % (v(80 + 2 * r), v(B1 + r)))
            g.i("v_and_b32 %s, 0xffff0000, %s" % (v(80 + 2 * r + 1), v(B1 + r)))
        for r in range(16):
            g.i("v_add_f32 %s, %s, %s" % (v(64 + r), v(64 + r), v(80 + r)))
        c1 = -2.0 * 0.7978845608028654 * 1.4426950408889634
        c2 = c1 * 0.044715
        g.i("s_mov_b32 s%d, %s" % (T0, hexf(c1)))
        g.i("s_mov_b32 s%d, %s" % (T1, hexf(c2)))
        g.i("v_mov_b32 v1, s%d" % T0)
        for r in range(16):
            g.i("v_mul_f32 %s, %s, %s" % (v(80 + r), v(64 + r), v(64 + r)))
        for r in range(16):
            g.i("v_fma_f32 %s, %s, s%d, v1" % (v(80 + r), v(80 + r), T1))
        for r in range(16):
            g.i("v_mul_f32 %s, %s, %s" % (v(80 + r), v(80 + r), v(64 + r)))
        for r in range(16):
            g.i("v_exp_f32 %s, %s" % (v(80 + r), v(80 + r)))
        for r in range(16):
            g.i("v_add_f32 %s, 1.0, %s" % (v(80 + r), v(80 + r)))
        for r in range(16):
            g.i("v_rcp_f32 %s, %s" % (v(80 + r), v(80 + r)))
        for r in range(16):
            g.i("v_mul_f32 %s, %s, %s" % (v(64 + r), v(64 + r), v(80 + r)))
        for r in range(8):
            g.i("v_cvt_pk_bf16_f32 %s, %s, %s" % (v(96 + r), v(64 + 2 * r), v(64 + 2 * r + 1)))
        nz = g.newlabel("L_nz")
        g.i("s_lshl_b32 s%d, s%d, 1" % (T0, S_FB4))
        g.i("s_lshr_b32 s%d, s%d, 1" % (T1, S_W))
        g.i("s_add_u32 s%d, s%d, s%d" % (T0, T0, T1))
        g.i("s_cmp_lg_u32 s%d, 43" % T0)
        g.i("s_cbranch_scc1 %s" % nz)
        for r in range(8):
            g.i("v_mov_b32 %s, 0" % v(96 + r))
        g.label(nz)
        g.i("s_lshl_b32 s%d, s%d, 11" % (T0, T0))
        g.i("s_lshl_b32 s%d, s%d, 1" % (T1, S_DB4))
        g.i("s_and_b32 s%d, s%d, 1" % (T2, S_W))
        g.i("s_add_u32 s%d, s%d, s%d" % (T1, T1, T2))
        g.i("s_mul_i32 s%d, s%d, %d" % (T1, T1, 88 * 1024))
        g.i("s_add_u32 s%d, s%d, s%d" % (T0, T0, T1))
        g.i("s_add_u32 s%d, s%d, 0x%x" % (T0, T0, WS_UF))
        g.nop(2)
        for j in range(2):
            g.i("buffer_store_dwordx4 %s, v212, %s, s%d offen offset:%d sc1" % (vr(96 + 4 * j, 4), sr(SRD_WS, 4), T0, j * 1024))
        g.i("s_lshl_b32 s%d, s%d, 8" % (T7, S_DB4))
        g.i("s_add_u32 s%d, s%d, %d" % (T7, T7, WS_CNT + C_B5 * 256))
        g.arrive(T7, 1)
        g.label(skip)
        g.fence()

    def p5(self):
        g = self
        S_WOFF, S_A0, S_A1 = S_C, S_D, S_E
        B2 = 216
        g.i("s_lshr_b32 s%d, s%d, 1" % (T0, S_W))
        g.i("s_lshl_b32 s%d, s%d, 6" % (T0, T0))
        g.i("s_lshl_b32 s%d, s%d, 7" % (T1, S_SB))
        g.i("s_add_u32 s%d, s%d, s%d" % (T0, T0, T1))
        g.i("v_and_b32 v1, 31, v0")
        g.i("v_lshlrev_b32 v1, 1, v1")
        g.i("buffer_load_ushort %s, v1, %s, s%d offen" % (v(B2), sr(SRD_B2, 4), T0), tag="b2")
        g.i("s_lshl_b32 s%d, s%d, 7" % (T0, S_SB))
        g.dma_rows_voff(208, 4096, T0)
        g.i("s_mul_i32 s%d, s%d, %d" % (S_WOFF, S_W, 22 * 16 * 4096))
        g.i("s_mul_i32 s%d, s%d, %d" % (T0, S_DB, 2 * 88 * 1024))
        g.i("s_mul_i32 s%d, s%d, %d" % (T1, S_W, 22 * 1024))
        g.i("s_add_u32 s%d, s%d, s%d" % (T0, T0, T1))
        g.i("s_add_u32 s%d, s%d, 0x%x" % (S_A0, T0, WS_UF))
        g.i("s_add_u32 s%d, s%d, %d" % (S_A1, S_A0, 88 * 1024))
        issue, wreads, ACT, WF, R = g.gemm_loop(22, SRD_W2, 4096, S_WOFF, S_A0, S_A1, (2, 1024), False, "p5")
        g.i("s_lshl_b32 s%d, s%d, 8" % (T7, S_DB))
        g.i("s_add_u32 s%d, s%d, %d" % (T7, T7, WS_CNT + C_B5 * 256))
        g.vm_wait("b2")
        g.wait_cnt(T7, 22, 1)
        g.run_gemm(22, issue, wreads, ACT, WF, R, False, "p5")
        g.reduce4()
        H = self.HREG
        g.i("v_lshlrev_b32 %s, 16, %s" % (v(B2), v(B2)))
        for r in range(8):
            g.i("v_lshlrev_b32 %s, 16, %s" % (v(80 + 2 * r), v(H + r)))
            g.i("v_and_b32 %s, 0xffff0000, %s" % (v(80 + 2 * r + 1), v(H + r)))
        for r in range(16):
            g.i("v_add_f32 %s, %s, %s" % (v(64 + r), v(64 + r), v(B2)))
        for r in range(16):
            g.i("v_add_f32 %s, %s, %s" % (v(64 + r), v(64 + r), v(80 + r)))
        for r in range(8):
            g.i("v_cvt_pk_bf16_f32 %s, %s, %s" % (v(96 + r), v(64 + 2 * r), v(64 + 2 * r + 1)))
        g.i("v_and_b32 v1, 31, v0")
        g.i("v_lshlrev_b32 v1, 10, v1")
        g.i("v_lshrrev_b32 v2, 5, v0")
        g.i("v_lshlrev_b32 v2, 3, v2")
        g.i("v_add_u32 v1, v1, v2")
        for i4 in range(4):
            g.i("buffer_store_dwordx2 %s, v1, %s, s%d offen offset:%d" % (vr(96 + 2 * i4, 2), sr(SRD_OUT, 4), S_CONST, 16 * i4))

    def build(self):
        g = self
        g.prologue()
        phases = [g.p1, g.p2, g.p3, g.p4, g.p5]
        for k, ph in enumerate(phases):
            ph()
            if self.stop_after == k + 1:
                break
        g.end_kernel()
        g.label("L_exit")
        g.i("s_endpgm")
        return g.text()


HEADER = """; Fused pre-LN MHA block + MLP-Mixer token MLP, one persistent launch (256 workgroups x 4 waves).
; @launch grid=(256,1,1) block=(256,1,1) lds=163840
.amdgcn_target "amdgcn-amd-amdhsa--gfx950"
.text
.globl {name}_kernel
.p2align 8
.type {name}_kernel,@function
{name}_kernel:
"""
FOOTER = """.section .rodata,"a"
.p2align 6
.amdhsa_kernel {name}_kernel
  .amdhsa_next_free_vgpr 512
  .amdhsa_next_free_sgpr 102
  .amdhsa_accum_offset 256
  .amdhsa_group_segment_fixed_size 0
  .amdhsa_kernarg_size 88
  .amdhsa_user_sgpr_count 2
  .amdhsa_user_sgpr_kernarg_segment_ptr 1
  .amdhsa_system_sgpr_workgroup_id_x 1
.end_amdhsa_kernel
"""


def generate(stop_after=99, opts=None):
    g = Gen(stop_after, opts)
    body = g.build()
    return HEADER.format(name=NAME) + body + FOOTER.format(name=NAME), g


if __name__ == "__main__":
    out = sys.argv[1] if len(sys.argv) > 1 else "cdna_kernels/%s.s" % NAME
    stop = int(sys.argv[2]) if len(sys.argv) > 2 else 99
    txt, g = generate(stop)
    open(out, "w").write(txt)
    print("wrote %s: %d lines, %d bytes, %d nop states" % (out, txt.count("\n"), len(txt), g.nops))
```

```python
import sys
import struct
sys.path.insert(0, "work")
from asmlib import Asm, v, vr, a, ar, s, sr

NAME = "sequential_preLN__mha_block__mixer_token_mlp__prompt"

WS_CNT = 0x0
WS_STATS = 0x8000
WS_KMAX = 0x48000
WS_QF = 0x100000
WS_KV = 0x300000
WS_OF = 0x800000
WS_HT = 0xA00000
WS_UF = 0xC00000
WS_DBG = 0xE00000
WS_SIZE = 0x1000000
C_B1, C_B2, C_B3, C_B4, C_B5 = 0, 16, 24, 56, 64

KV_RS, KV_TS, KV_N = 16512, 2064, 3
L_WO = 49536
L_W2B = 115072
L_W2B2 = 33024
L_MISC = 156032
L_SCR = L_WO

S_W = 3
SRD_X, SRD_WQ, SRD_WO, SRD_W1, SRD_W2, SRD_B1, SRD_B2, SRD_OUT, SRD_WS = 8, 12, 16, 20, 24, 28, 32, 36, 40
S_DBG = 44
S_XCD = 46
S_SLOT = 47
T0, T1, T2, T3, T4, T5, T6, T7 = 48, 49, 50, 51, 52, 53, 54, 55
S_A, S_B, S_C, S_D, S_E, S_F = 56, 57, 58, 59, 60, 61
S_SB, S_DB, S_FB, S_DB4, S_OUTOFF = 62, 63, 64, 65, 66
S_EXEC = 74
S_SPIN = 76
S_PWO, S_PW1, S_PW2, S_PM0 = 84, 85, 86, 87
SPIN_MAX = 0x40000

VL16 = 6
HREG = 128
PF = 136
XR = 144
W2A = 152
NW2A, NW2B, NW2B2, NW2C = 13, 5, 2, 2


def f2u(x):
    return struct.unpack("<I", struct.pack("<f", x))[0]


def hexf(x):
    return "0x%08x" % f2u(x)


class Gen(Asm):
    def __init__(self, stop_after=99, opts=None):
        super().__init__()
        self.stop_after = stop_after
        self.opts = opts or {}

    def wave0_begin(self):
        lab = self.newlabel("L_w0")
        self.i("s_cmp_lg_u32 s%d, 0" % S_W)
        self.i("s_cbranch_scc1 %s" % lab)
        return lab

    def arrive(self, off_sgpr, vt):
        self.vm_wait_all()
        self.i("s_barrier")
        lab = self.wave0_begin()
        self.i("s_mov_b64 exec, 1")
        self.i("v_mov_b32 %s, 1" % v(vt))
        self.i("v_mov_b32 %s, s%d" % (v(vt + 1), off_sgpr))
        self.i("buffer_atomic_add %s, %s, %s, 0 offen sc1" % (v(vt), v(vt + 1), sr(SRD_WS, 4)))
        self.vm.pop()
        self.i("s_mov_b64 exec, -1")
        self.label(lab)

    def wait_cnt(self, off_sgpr, target, vt):
        lab = self.wave0_begin()
        loop = self.newlabel("L_poll")
        self.i("v_mov_b32 %s, s%d" % (v(vt + 1), off_sgpr))
        self.i("s_mov_b32 s%d, 0" % S_SPIN)
        self.label(loop)
        self.i("buffer_load_dword %s, %s, %s, 0 offen sc1" % (v(vt), v(vt + 1), sr(SRD_WS, 4)))
        self.vm.pop()
        self.i("s_add_u32 s%d, s%d, 1" % (S_SPIN, S_SPIN))
        self.i("s_waitcnt vmcnt(0)")
        self.i("v_readfirstlane_b32 s%d, %s" % (T0, v(vt)))
        self.i("s_cmp_ge_u32 s%d, %d" % (T0, target))
        self.i("s_cbranch_scc1 %s" % lab)
        self.i("s_cmp_lt_u32 s%d, 0x%x" % (S_SPIN, SPIN_MAX))
        self.i("s_cbranch_scc1 %s" % loop)
        self.label(lab)
        self.i("s_barrier")

    def cross_half(self, reg, tmp, op="v_add_f32"):
        self.i("v_mov_b32 %s, %s" % (v(tmp), v(reg)))
        self.i("v_permlane32_swap_b32 %s, %s" % (v(reg), v(tmp)))
        self.i("%s %s, %s, %s" % (op, v(reg), v(reg), v(tmp)))

    def stamp(self, idx):
        if not self.opts.get("stamps"):
            return
        g = self
        lab = g.wave0_begin()
        g.i("s_memtime s[80:81]")
        g.i("s_lshl_b32 s82, s2, 7")
        g.i("s_add_u32 s82, s82, %d" % (WS_DBG + idx * 4))
        g.i("s_waitcnt lgkmcnt(0)")
        g.i("v_mov_b32 v4, s80")
        g.i("v_mov_b32 v5, 0")
        g.i("buffer_store_dword v4, v5, %s, s82 offen" % sr(SRD_WS, 4))
        g.vm.pop()
        g.label(lab)

    def cnt_off(self, dst, idx_sgpr, cbase, shift=0):
        g = self
        if shift:
            g.i("s_lshr_b32 s%d, s%d, %d" % (dst, idx_sgpr, shift))
            g.i("s_lshl_b32 s%d, s%d, 8" % (dst, dst))
        else:
            g.i("s_lshl_b32 s%d, s%d, 8" % (dst, idx_sgpr))
        g.i("s_add_u32 s%d, s%d, %d" % (dst, dst, WS_CNT + cbase * 256))

    def srd(self, dst, src, nbytes):
        g = self
        g.i("s_mov_b32 s%d, s%d" % (dst, src))
        g.i("s_and_b32 s%d, s%d, 0xffff" % (dst + 1, src + 1))
        g.i("s_mov_b32 s%d, 0x%x" % (dst + 2, nbytes))
        g.i("s_mov_b32 s%d, 0x20000" % (dst + 3))

    def pk(self, op, d, x, y, z=None, bx=False, by=False, negx=False):
        n = 3 if z is not None else 2
        t = "v_pk_%s_f32 %s, %s, %s" % (op, vr(d, 2), vr(x, 2), vr(y, 2))
        if z is not None:
            t += ", %s" % vr(z, 2)
        if bx or by:
            sel = [0 if bx else 1, 0 if by else 1] + ([1] if n == 3 else [])
            t += " op_sel_hi:[%s]" % ",".join(map(str, sel))
        if negx:
            ng = [1, 0] + ([0] if n == 3 else [])
            t += " neg_lo:[%s] neg_hi:[%s]" % (",".join(map(str, ng)), ",".join(map(str, ng)))
        self.i(t)

    def unpack_bf16(self, dst, src, n):
        for r in range(n):
            self.i("v_lshlrev_b32 %s, 16, %s" % (v(dst + 2 * r), v(src + r)))
            self.i("v_and_b32 %s, 0xffff0000, %s" % (v(dst + 2 * r + 1), v(src + r)))

    def mfma(self, d, am, bm, c):
        self.i("v_mfma_f32_32x32x16_bf16 %s, %s, %s, %s" % (vr(d, 16), am, bm, c))

    def p1(self):
        g = self
        g.i("s_cmp_ge_u32 s2, 256")
        g.i("s_cbranch_scc1 L_exit")
        g.i("s_load_dwordx16 s[48:63], s[0:1], 0")
        g.i("s_load_dwordx4 s[64:67], s[0:1], 64")
        g.i("s_load_dwordx2 s[68:69], s[0:1], 80")
        g.i("v_lshrrev_b32 v1, 6, v0")
        g.i("v_and_b32 v0, 63, v0")
        g.i("v_readfirstlane_b32 s%d, v1" % S_W)
        g.i("s_and_b32 s%d, s2, 7" % S_XCD)
        g.i("s_lshr_b32 s%d, s2, 3" % S_SLOT)
        g.i("v_lshlrev_b32 %s, 4, v0" % v(VL16))
        SLOT = 28672
        CS = L_MISC
        ST = L_MISC + 512
        S_RB, S_CB = 90, 91
        S_XO, S_WOFF, S_MX, S_MW = 92, 93, 94, 95
        U0, U1 = 96, 97
        LOOK = self.opts.get("p1look", 3)
        g.i("s_lshr_b32 s%d, s%d, 1" % (U0, S_XCD))
        g.i("s_lshl_b32 s%d, s%d, 2" % (U0, U0))
        g.i("s_lshr_b32 s%d, s%d, 3" % (U1, S_SLOT))
        g.i("s_add_u32 s%d, s%d, s%d" % (S_RB, U0, U1))
        g.i("s_and_b32 s%d, s%d, 1" % (U0, S_XCD))
        g.i("s_lshl_b32 s%d, s%d, 3" % (U0, U0))
        g.i("s_and_b32 s%d, s%d, 7" % (U1, S_SLOT))
        g.i("s_add_u32 s%d, s%d, s%d" % (S_CB, U0, U1))
        g.i("s_lshl_b32 s%d, s%d, 17" % (U0, S_RB))
        g.i("s_lshl_b32 s%d, s%d, 15" % (U1, S_W))
        g.i("s_add_u32 s%d, s%d, s%d" % (S_XO, U0, U1))
        g.i("s_mov_b32 s%d, 0" % S_WOFF)
        g.i("s_lshl_b32 s%d, s%d, 12" % (S_MX, S_W))
        g.i("s_mul_i32 s%d, s%d, 3072" % (S_MW, S_W))
        g.i("s_add_u32 s%d, s%d, 16384" % (S_MW, S_MW))
        VXD = 8
        VWD = 12
        VXR = 16
        VWR = 28
        ONES = 40
        XF = [44, 48]
        WF = [52, 64]
        AQ, AK, AV = 80, 96, 112
        S1, S2 = 42, 43
        CSA = 76
        FLAG = 79
        T = 128
        g.i("v_lshrrev_b32 v1, 3, v0")
        g.i("v_lshlrev_b32 v1, 10, v1")
        g.i("v_and_b32 v2, 7, v0")
        g.i("v_lshrrev_b32 v3, 4, v0")
        for q in range(4):
            g.i("v_add_u32 v4, %d, v3" % (4 * (q & 1)))
            g.i("v_xor_b32 v4, v2, v4")
            g.i("v_lshlrev_b32 v4, 4, v4")
            g.i("v_add3_u32 %s, v4, v1, s%d" % (v(VXD + q), U0) if False else "v_add_u32 v4, v1, v4")
            g.i("v_add_u32 %s, %d, v4" % (v(VXD + q), q * 7168))
        g.i("v_lshrrev_b32 v1, 2, v0")
        g.i("s_lshl_b32 s%d, s%d, 4" % (U0, S_W))
        g.i("v_add_u32 v1, s%d, v1" % U0)
        g.i("v_mul_u32_u24 v1, 3072, v1")
        g.i("v_and_b32 v2, 3, v0")
        g.i("v_lshlrev_b32 v2, 4, v2")
        g.i("s_lshl_b32 s%d, s%d, 6" % (U1, S_CB))
        g.i("v_add3_u32 %s, v1, v2, s%d" % (v(VWD), U1))
        g.i("s_waitcnt lgkmcnt(0)")
        g.srd(SRD_X, 48, 2048 * 512 * 2)
        g.srd(SRD_WQ, 50, 512 * 1536 * 2)

        def chunk_parts(c):
            slot = (c % 5) * SLOT
            t = ("p1", c)
            X = lambda q: ("buffer_load_dwordx4 %s, %s, s%d offen offset:%d lds" % (v(VXD + q), sr(SRD_X, 4), S_XO, q * 1024), t)
            W = lambda gi: ("buffer_load_dwordx4 %s, %s, s%d offen offset:%d lds" % (v(VWD), sr(SRD_WQ, 4), S_WOFF, gi * 1024), t)
            return [
                [("s_add_u32 m0, s%d, %d" % (S_MX, slot), None), X(0), X(1)],
                [X(2), X(3), ("s_add_u32 s%d, s%d, 128" % (S_XO, S_XO), None)],
                [("s_add_u32 m0, s%d, %d" % (S_MW, slot), None), W(0), W(1)],
                [W(2), ("s_add_u32 s%d, s%d, %d" % (S_WOFF, S_WOFF, 64 * 3072), None)],
            ]

        def emit(grp):
            for t, tag in grp:
                g.i(t, tag=tag)
        for part in chunk_parts(0):
            emit(part)
        g.srd(SRD_WS, 68, WS_SIZE)
        g.i("s_mov_b32 s%d, s66" % S_DBG)
        g.i("s_mov_b32 s%d, s67" % (S_DBG + 1))
        noinit = g.newlabel("L_noinit")
        g.i("s_or_b32 s%d, s2, s%d" % (U0, S_W))
        g.i("s_cmp_lg_u32 s%d, 0" % U0)
        g.i("s_cbranch_scc1 %s" % noinit)
        g.i("v_lshlrev_b32 v1, 8, v0")
        g.i("v_mov_b32 v2, 0")
        g.i("buffer_store_dword v2, v1, %s, 0 offen sc0 sc1" % sr(SRD_WS, 4)); g.vm.pop()
        g.i("v_add_u32 v1, 0x4000, v1")
        g.i("buffer_store_dword v2, v1, %s, 0 offen sc0 sc1" % sr(SRD_WS, 4)); g.vm.pop()
        g.label(noinit)
        for c in range(1, LOOK):
            for part in chunk_parts(c):
                emit(part)
        g.srd(SRD_WO, 52, 512 * 512 * 2)
        g.srd(SRD_W1, 56, 2048 * 1376 * 2)
        g.srd(SRD_B1, 58, 1376 * 2)
        g.srd(SRD_W2, 60, 1376 * 2048 * 2)
        g.srd(SRD_B2, 62, 2048 * 2)
        g.srd(SRD_OUT, 64, 2048 * 512 * 2)
        g.stamp(0)
        g.i("v_and_b32 v1, 31, v0")
        g.i("v_lshrrev_b32 v2, 5, v0")
        g.i("v_lshrrev_b32 v3, 1, v1")
        g.i("v_and_b32 v3, 7, v3")
        g.i("v_lshlrev_b32 v4, 7, v1")
        g.i("v_add_u32 v4, s%d, v4" % S_MX)
        g.i("v_and_b32 v1, 15, v0")
        g.i("v_lshrrev_b32 v1, 2, v1")
        g.i("v_lshl_add_u32 v1, v2, 3, v1")
        g.i("v_lshlrev_b32 v1, 6, v1")
        g.i("v_bfe_u32 v5, v0, 4, 1")
        g.i("v_lshl_add_u32 v1, v5, 5, v1")
        g.i("v_and_b32 v5, 3, v0")
        g.i("v_lshl_add_u32 v1, v5, 3, v1")
        g.i("v_add_u32 v1, 16384, v1")
        for i in range(4):
            g.i("s_add_u32 s%d, s%d, %d" % (U0, S_W, i))
            g.i("s_and_b32 s%d, s%d, 3" % (U0, U0))
            g.i("s_lshl_b32 s%d, s%d, 1" % (U1, U0))
            g.i("v_add_u32 v5, s%d, v2" % U1)
            g.i("v_xor_b32 v5, v5, v3")
            g.i("v_lshl_add_u32 %s, v5, 4, v4" % v(VXR + i))
            g.i("v_add_u32 %s, %d, %s" % (v(VXR + 4 + i), 2 * SLOT, v(VXR + i)))
            g.i("v_add_u32 %s, %d, %s" % (v(VXR + 8 + i), 4 * SLOT, v(VXR + i)))
            g.i("s_mul_i32 s%d, s%d, 3072" % (U0, U0))
            g.i("v_add_u32 %s, s%d, v1" % (v(VWR + i), U0))
            g.i("v_add_u32 %s, %d, %s" % (v(VWR + 4 + i), 2 * SLOT, v(VWR + i)))
            g.i("v_add_u32 %s, %d, %s" % (v(VWR + 8 + i), 4 * SLOT, v(VWR + i)))
        g.i("v_mov_b32 %s, 0x3f803f80" % v(ONES))
        g.i("v_mov_b32 %s, 0" % v(S1))
        g.i("v_mov_b32 %s, 0" % v(S2))
        for k in range(3):
            g.i("v_mov_b32 %s, 0" % v(CSA + k))
        g.i("v_lshlrev_b32 v1, 2, v0")
        g.i("v_mov_b32 v2, 0")
        g.i("v_add_u32 v1, %d, v1" % CS)
        g.i("ds_write_b32 v1, v2")
        g.i("ds_write_b32 v1, v2 offset:256")
        g.i("s_waitcnt lgkmcnt(0)")

        def reads(c, i, b):
            st = (c % 5) // 2
            so = ((c % 5) % 2) * SLOT
            g.i("ds_read_b128 %s, %s offset:%d" % (vr(XF[b], 4), v(VXR + 4 * st + i), so))
            for gi in range(3):
                for hh in range(2):
                    g.i("ds_read_b64_tr_b16 %s, %s offset:%d" % (vr(WF[b] + 4 * gi + 2 * hh, 2), v(VWR + 4 * st + i), so + gi * 1024 + hh * 256))

        first = True
        for c in range(8):
            g.vm_wait(("p1", c))
            g.i("s_barrier")
            if c == 0:
                nf = g.newlabel("L_noflag")
                g.i("s_or_b32 s%d, s2, s%d" % (U0, S_W))
                g.i("s_cmp_lg_u32 s%d, 0" % U0)
                g.i("s_cbranch_scc1 %s" % nf)
                g.i("v_mov_b32 v1, 0")
                g.i("v_mov_b32 v2, 1")
                g.i("global_store_dword v1, v2, %s sc0 sc1" % sr(S_DBG, 2)); g.vm.pop()
                g.label(nf)
            if c == 6:
                g.i("v_mov_b32 v1, 0")
                g.i("global_load_dword %s, v1, %s sc1" % (v(FLAG), sr(S_DBG, 2)), tag="flag")
            parts = chunk_parts(c + LOOK) if c + LOOK < 8 else [[], [], [], []]
            reads(c, 0, 0)
            for i in range(4):
                b = i & 1
                if i < 3:
                    reads(c, i + 1, 1 - b)
                    g.i("s_waitcnt lgkmcnt(7)")
                else:
                    g.i("s_waitcnt lgkmcnt(0)")
                cq = "0" if first else vr(AQ, 16)
                ck = "0" if first else vr(AK, 16)
                cv = "0" if first else vr(AV, 16)
                first = False
                g.mfma(AQ, vr(WF[b], 4), vr(XF[b], 4), cq)
                for k in range(4):
                    g.i("v_dot2c_f32_bf16 %s, %s, %s" % (v(S1), v(XF[b] + k), v(ONES)))
                g.mfma(AK, vr(WF[b] + 4, 4), vr(XF[b], 4), ck)
                for k in range(4):
                    g.i("v_dot2c_f32_bf16 %s, %s, %s" % (v(S2), v(XF[b] + k), v(XF[b] + k)))
                g.mfma(AV, vr(XF[b], 4), vr(WF[b] + 8, 4), cv)
                emit(parts[i])
                if i == 0:
                    for gi in range(3):
                        for k in range(4):
                            g.i("v_dot2c_f32_bf16 %s, %s, %s" % (v(CSA + gi), v(WF[b] + 4 * gi + k), v(ONES)))
        g.stamp(1)
        g.cross_half(S1, T)
        g.cross_half(S2, T)
        MEAN, RSTD, RQ = T + 2, T + 4, T + 6
        g.i("v_mul_f32 %s, %s, %s" % (v(MEAN), hexf(1.0 / 512), v(S1)))
        g.i("v_mul_f32 %s, %s, %s" % (v(T), hexf(1.0 / 512), v(S2)))
        g.i("v_fma_f32 %s, -%s, %s, %s" % (v(T), v(MEAN), v(MEAN), v(T)))
        g.i("v_max_f32 %s, 0, %s" % (v(T), v(T)))
        g.i("v_add_f32 %s, %s, %s" % (v(T), hexf(1e-5), v(T)))
        g.i("v_rsq_f32 %s, %s" % (v(RSTD), v(T)))
        g.i("v_and_b32 v1, 31, v0")
        g.i("v_lshlrev_b32 v1, 2, v1")
        g.i("s_lshl_b32 s%d, s%d, 8" % (U0, S_W))
        g.i("s_add_u32 s%d, s%d, %d" % (U0, U0, ST))
        g.i("v_add_u32 v3, %d, v1" % CS)
        for gi in range(3):
            g.i("ds_add_f32 v3, %s offset:%d" % (v(CSA + gi), gi * 128))
        g.i("v_add_u32 v2, s%d, v1" % U0)
        g.i("ds_write_b32 v2, %s" % v(RSTD))
        g.i("ds_write_b32 v2, %s offset:128" % v(MEAN))
        QS = 0.25 * 1.4426950408889634
        g.i("v_mul_f32 %s, %s, %s" % (v(RQ), hexf(QS), v(RSTD)))
        CQ, CK, RV, MV, CV = 144, 160, 176, 192, 208
        g.i("v_lshrrev_b32 v4, 5, v0")
        g.i("v_lshlrev_b32 v4, 4, v4")
        g.i("v_add_u32 v5, %d, v4" % CS)
        g.i("v_add_u32 v7, s%d, v4" % U0)
        S_TILE, S_HA = 98, 99
        g.i("s_lshl_b32 s%d, s%d, 2" % (S_TILE, S_RB))
        g.i("s_add_u32 s%d, s%d, s%d" % (S_TILE, S_TILE, S_W))
        g.i("s_lshl_b32 s%d, s%d, 1" % (S_HA, S_CB))
        g.i("s_lshl_b32 s%d, s%d, 16" % (T0, S_HA))
        g.i("s_lshl_b32 s%d, s%d, 10" % (T1, S_TILE))
        g.i("s_add_u32 s%d, s%d, s%d" % (T0, T0, T1))
        g.i("s_add_u32 s%d, s%d, 0x%x" % (T0, T0, WS_QF))
        g.i("s_add_u32 s%d, s%d, 0x10000" % (T1, T0))
        g.i("s_lshl_b32 s%d, s%d, 17" % (T2, S_HA))
        g.i("s_lshl_b32 s%d, s%d, 11" % (T3, S_TILE))
        g.i("s_add_u32 s%d, s%d, s%d" % (T2, T2, T3))
        g.i("s_add_u32 s%d, s%d, 0x%x" % (T2, T2, WS_KV))
        g.i("s_add_u32 s%d, s%d, 0x20000" % (T3, T2))
        g.i("s_add_u32 s%d, s%d, 1024" % (T4, T2))
        g.i("s_lshl_b32 s%d, s%d, 8" % (T5, S_HA))
        g.i("s_lshl_b32 s%d, s%d, 2" % (T6, S_TILE))
        g.i("s_add_u32 s%d, s%d, s%d" % (T5, T5, T6))
        g.i("s_add_u32 s%d, s%d, 0x%x" % (T5, T5, WS_KMAX))
        g.cnt_off(T7, S_CB, C_B1)
        g.i("s_waitcnt lgkmcnt(0)")
        g.i("s_barrier")
        for i4 in range(4):
            g.i("ds_read_b128 %s, v5 offset:%d" % (vr(CK + 4 * i4, 4), 128 + i4 * 32))
        for i4 in range(4):
            g.i("ds_read_b128 %s, v5 offset:%d" % (vr(CQ + 4 * i4, 4), i4 * 32))
        g.i("ds_read_b32 %s, v3 offset:256" % v(CV))
        for i4 in range(4):
            g.i("ds_read_b128 %s, v7 offset:%d" % (vr(MV + 4 * i4, 4), 128 + i4 * 32))
        for i4 in range(4):
            g.i("ds_read_b128 %s, v7 offset:%d" % (vr(RV + 4 * i4, 4), i4 * 32))
        PQ, PK, PV = 216, 224, 232
        KA, KB = T + 8, T + 10
        g.i("v_lshlrev_b32 v2, 4, v4")
        g.i("v_and_b32 v3, 15, v0")
        g.i("v_lshl_add_u32 v2, v3, 4, v2")
        g.i("v_bfe_u32 v4, v0, 4, 1")
        g.i("v_lshlrev_b32 v4, 17, v4")
        g.i("v_add_u32 v2, v2, v4")
        g.i("s_waitcnt lgkmcnt(13)")
        for r in range(8):
            g.pk("fma", AK + 2 * r, MEAN, CK + 2 * r, AK + 2 * r, bx=True, negx=True)
        for r in range(8):
            g.pk("mul", AK + 2 * r, RSTD, AK + 2 * r, bx=True)
        for r in range(8):
            g.i("v_cvt_pk_bf16_f32 %s, %s, %s" % (v(PK + r), v(AK + 2 * r), v(AK + 2 * r + 1)))
        g.i("buffer_store_dwordx4 %s, %s, %s, s%d offen sc1" % (vr(PK, 4), v(VL16), sr(SRD_WS, 4), T2))
        g.i("buffer_store_dwordx4 %s, %s, %s, s%d offen sc1" % (vr(PK + 4, 4), v(VL16), sr(SRD_WS, 4), T3))
        g.i("s_waitcnt lgkmcnt(9)")
        for r in range(8):
            g.pk("fma", AQ + 2 * r, MEAN, CQ + 2 * r, AQ + 2 * r, bx=True, negx=True)
        for r in range(8):
            g.pk("mul", AQ + 2 * r, RQ, AQ + 2 * r, bx=True)
        for r in range(8):
            g.i("v_cvt_pk_bf16_f32 %s, %s, %s" % (v(PQ + r), v(AQ + 2 * r), v(AQ + 2 * r + 1)))
        g.i("buffer_store_dwordx4 %s, %s, %s, s%d offen sc1" % (vr(PQ, 4), v(VL16), sr(SRD_WS, 4), T0))
        g.i("buffer_store_dwordx4 %s, %s, %s, s%d offen sc1" % (vr(PQ + 4, 4), v(VL16), sr(SRD_WS, 4), T1))
        g.i("s_waitcnt lgkmcnt(0)")
        for r in range(8):
            g.pk("fma", AV + 2 * r, CV, MV + 2 * r, AV + 2 * r, bx=True, negx=True)
        for r in range(8):
            g.pk("mul", AV + 2 * r, RV + 2 * r, AV + 2 * r)
        for r in range(8):
            g.i("v_cvt_pk_bf16_f32 %s, %s, %s" % (v(PV + r), v(AV + 2 * r), v(AV + 2 * r + 1)))
        g.i("buffer_store_dwordx4 %s, v2, %s, s%d offen sc1" % (vr(PV, 4), sr(SRD_WS, 4), T4))
        g.i("buffer_store_dwordx4 %s, v2, %s, s%d offen offset:512 sc1" % (vr(PV + 4, 4), sr(SRD_WS, 4), T4))
        g.pk("mul", KA, AK, AK)
        g.pk("mul", KB, AK + 8, AK + 8)
        for r in range(1, 4):
            g.pk("fma", KA, AK + 2 * r, AK + 2 * r, KA)
            g.pk("fma", KB, AK + 8 + 2 * r, AK + 8 + 2 * r, KB)
        g.i("v_add_f32 %s, %s, %s" % (v(KA), v(KA), v(KA + 1)))
        g.i("v_add_f32 %s, %s, %s" % (v(KB), v(KB), v(KB + 1)))
        g.i("v_permlane32_swap_b32 %s, %s" % (v(KA), v(KB)))
        g.i("v_add_f32 %s, %s, %s" % (v(KA), v(KA), v(KB)))
        for sh in (8, 4, 2, 1):
            g.i("v_max_f32_dpp %s, %s, %s row_ror:%d row_mask:0xf bank_mask:0xf" % (v(KA), v(KA), v(KA), sh))
        g.i("v_mov_b32 %s, %s" % (v(T), v(KA)))
        g.i("v_permlane16_swap_b32 %s, %s" % (v(KA), v(T)))
        g.i("v_max_f32 %s, %s, %s" % (v(KA), v(KA), v(T)))
        g.i("v_lshrrev_b32 v3, 5, v0")
        g.i("v_lshlrev_b32 v3, 8, v3")
        g.i("s_mov_b32 s%d, 1" % S_EXEC)
        g.i("s_mov_b32 s%d, 1" % (S_EXEC + 1))
        g.i("s_mov_b64 exec, %s" % sr(S_EXEC, 2))
        g.i("buffer_store_dword %s, v3, %s, s%d offen sc1" % (v(KA), sr(SRD_WS, 4), T5))
        g.i("s_mov_b64 exec, -1")
        g.vm_wait("flag")
        lab = g.wave0_begin()
        g.i("v_readfirstlane_b32 s%d, %s" % (U0, v(FLAG)))
        g.i("s_cmp_eq_u32 s%d, 1" % U0)
        g.i("s_cbranch_scc1 %s" % lab)
        loop = g.newlabel("L_initpoll")
        g.i("v_mov_b32 v1, 0")
        g.i("s_mov_b32 s%d, 0" % S_SPIN)
        g.label(loop)
        g.i("global_load_dword %s, v1, %s sc1" % (v(FLAG), sr(S_DBG, 2))); g.vm.pop()
        g.i("s_add_u32 s%d, s%d, 1" % (S_SPIN, S_SPIN))
        g.i("s_waitcnt vmcnt(0)")
        g.i("v_readfirstlane_b32 s%d, %s" % (U0, v(FLAG)))
        g.i("s_cmp_eq_u32 s%d, 1" % U0)
        g.i("s_cbranch_scc1 %s" % lab)
        g.i("s_cmp_lt_u32 s%d, 0x%x" % (S_SPIN, SPIN_MAX))
        g.i("s_cbranch_scc1 %s" % loop)
        g.label(lab)
        g.arrive(T7, 1)
        g.stamp(2)

    def tiles(self):
        g = self
        g.i("s_and_b32 s%d, s%d, 1" % (T0, S_XCD))
        g.i("s_lshl_b32 s%d, s%d, 2" % (T0, T0))
        g.i("s_and_b32 s%d, s%d, 3" % (T1, S_SLOT))
        g.i("s_add_u32 s%d, s%d, s%d" % (S_DB, T0, T1))
        g.i("s_lshr_b32 s%d, s%d, 1" % (T0, S_XCD))
        g.i("s_lshl_b32 s%d, s%d, 3" % (T0, T0))
        g.i("s_lshr_b32 s%d, s%d, 2" % (T1, S_SLOT))
        g.i("s_add_u32 s%d, s%d, s%d" % (S_SB, T0, T1))
        g.i("s_and_b32 s%d, s%d, 3" % (T0, S_XCD))
        g.i("s_lshl_b32 s%d, s%d, 1" % (T0, T0))
        g.i("s_and_b32 s%d, s%d, 1" % (T1, S_SLOT))
        g.i("s_add_u32 s%d, s%d, s%d" % (S_DB4, T0, T1))
        g.i("s_lshr_b32 s%d, s%d, 2" % (T0, S_XCD))
        g.i("s_mul_i32 s%d, s%d, 11" % (T0, T0))
        g.i("s_lshr_b32 s%d, s%d, 1" % (T1, S_SLOT))
        g.i("s_add_u32 s%d, s%d, s%d" % (S_FB, T0, T1))
        g.i("s_cmp_lt_u32 s%d, 22" % S_SLOT)
        g.i("s_cselect_b32 s%d, s%d, 0" % (SRD_W1 + 2, SRD_W1 + 2))
        g.i("s_lshl_b32 s%d, s%d, 16" % (T0, S_SB))
        g.i("s_lshr_b32 s%d, s%d, 1" % (T1, S_W))
        g.i("s_lshl_b32 s%d, s%d, 15" % (T1, T1))
        g.i("s_add_u32 s%d, s%d, s%d" % (T0, T0, T1))
        g.i("s_lshl_b32 s%d, s%d, 7" % (T1, S_DB))
        g.i("s_add_u32 s%d, s%d, s%d" % (T0, T0, T1))
        g.i("s_and_b32 s%d, s%d, 1" % (T1, S_W))
        g.i("s_lshl_b32 s%d, s%d, 6" % (T1, T1))
        g.i("s_add_u32 s%d, s%d, s%d" % (S_OUTOFF, T0, T1))

    def tr_lane(self, dst, hshift):
        g = self
        g.i("v_lshrrev_b32 v1, 5, v0")
        g.i("v_lshlrev_b32 v1, %d, v1" % hshift)
        g.i("v_bfe_u32 v2, v0, 2, 2")
        g.i("v_add_u32 v1, v1, v2")
        g.i("v_lshlrev_b32 v1, 7, v1")
        g.i("v_bfe_u32 v2, v0, 4, 1")
        g.i("v_bfe_u32 v3, v0, 1, 1")
        g.i("v_lshl_add_u32 v2, v2, 1, v3")
        g.i("v_bfe_u32 v3, v0, 3, 1")
        g.i("v_lshlrev_b32 v3, 2, v3")
        g.i("v_xor_b32 v2, v2, v3")
        g.i("v_lshl_add_u32 v1, v2, 4, v1")
        g.i("v_and_b32 v3, 1, v0")
        g.i("v_lshl_add_u32 %s, v3, 3, v1" % v(dst))

    def tr_pair(self, dst, lane, base):
        g = self
        g.i("v_add_u32 %s, %s, %s" % (v(dst), str(base), v(lane)))
        g.i("v_xor_b32 %s, 64, %s" % (v(dst + 1), v(dst)))

    def dma_rows_voff(self, dst, pitch, colbytes_sgpr):
        g = self
        g.i("v_lshrrev_b32 v1, 3, v0")
        g.i("v_mul_u32_u24 v1, %d, v1" % pitch)
        g.i("v_and_b32 v2, 7, v0")
        g.i("v_bfe_u32 v3, v0, 4, 1")
        g.i("v_lshlrev_b32 v3, 2, v3")
        g.i("v_xor_b32 v2, v2, v3")
        g.i("v_lshlrev_b32 v2, 4, v2")
        g.i("v_add3_u32 %s, v1, v2, s%d" % (v(dst), colbytes_sgpr))

    def prefetch_setup(self):
        g = self
        g.i("s_lshl_b32 s%d, s%d, 7" % (T0, S_FB))
        g.dma_rows_voff(PF, 2752, T0)
        g.i("v_add_u32 %s, %d, %s" % (v(PF + 1), 8 * 2752, v(PF)))
        g.i("s_mul_i32 s%d, s%d, %d" % (S_PW1, S_W, 512 * 2752))
        g.i("s_lshl_b32 s%d, s%d, 7" % (T0, S_SB))
        g.dma_rows_voff(PF + 2, 4096, T0)
        g.i("v_add_u32 %s, %d, %s" % (v(PF + 3), 8 * 4096 - 1024, v(PF + 2)))
        g.i("s_mul_i32 s%d, s%d, %d" % (S_PW2, S_W, 22 * 16 * 4096))
        g.i("s_lshl_b32 s%d, s%d, 7" % (T0, S_DB))
        g.dma_rows_voff(PF + 4, 1024, T0)
        g.i("v_add_u32 %s, %d, %s" % (v(PF + 5), 8 * 1024 - 1024, v(PF + 4)))
        g.i("s_lshl_b32 s%d, s%d, 17" % (S_PWO, S_W))
        g.i("v_and_b32 v1, 31, v0")
        g.i("v_lshlrev_b32 v1, 10, v1")
        g.i("v_lshrrev_b32 v2, 5, v0")
        g.i("v_lshl_add_u32 %s, v2, 3, v1" % v(PF + 6))

    def job_wo(self, k):
        return [("s_mul_i32 s%d, s%d, 16384" % (S_PM0, S_W), None),
                ("s_add_u32 m0, s%d, %d" % (S_PM0, L_WO + k * 2048), None),
                ("buffer_load_dwordx4 %s, %s, s%d offen lds" % (v(PF + 4), sr(SRD_WO, 4), S_PWO), "pf"),
                ("buffer_load_dwordx4 %s, %s, s%d offen offset:1024 lds" % (v(PF + 5), sr(SRD_WO, 4), S_PWO), "pf"),
                ("s_add_u32 s%d, s%d, 16384" % (S_PWO, S_PWO), None)][(0 if k == 0 else 1):]

    def job_w1(self, j):
        return [("buffer_load_dwordx4 %s, %s, %s, s%d offen" % (ar(8 * j, 4), v(PF), sr(SRD_W1, 4), S_PW1), "pf"),
                ("buffer_load_dwordx4 %s, %s, %s, s%d offen" % (ar(8 * j + 4, 4), v(PF + 1), sr(SRD_W1, 4), S_PW1), "pf"),
                ("s_add_u32 s%d, s%d, %d" % (S_PW1, S_PW1, 16 * 2752), None)]

    def job_w2reg(self, r0, r1):
        return [("buffer_load_dwordx4 %s, %s, %s, s%d offen" % (r0, v(PF + 2), sr(SRD_W2, 4), S_PW2), "pf"),
                ("buffer_load_dwordx4 %s, %s, %s, s%d offen offset:1024" % (r1, v(PF + 3), sr(SRD_W2, 4), S_PW2), "pf"),
                ("s_add_u32 s%d, s%d, %d" % (S_PW2, S_PW2, 16 * 4096), None)]

    def job_w2lds(self, p):
        if p < NW2B:
            pre = [("s_mul_i32 s%d, s%d, %d" % (S_PM0, S_W, NW2B * 2048), None)] if p == 0 else []
            m0 = ("s_add_u32 m0, s%d, %d" % (S_PM0, L_W2B + p * 2048), None)
        else:
            q = p - NW2B
            pre = [("s_lshl_b32 s%d, s%d, 12" % (S_PM0, S_W), None)] if q == 0 else []
            m0 = ("s_add_u32 m0, s%d, %d" % (S_PM0, L_W2B2 + q * 2048), None)
        return pre + [m0,
                      ("buffer_load_dwordx4 %s, %s, s%d offen lds" % (v(PF + 2), sr(SRD_W2, 4), S_PW2), "pf"),
                      ("buffer_load_dwordx4 %s, %s, s%d offen offset:1024 lds" % (v(PF + 3), sr(SRD_W2, 4), S_PW2), "pf"),
                      ("s_add_u32 s%d, s%d, %d" % (S_PW2, S_PW2, 16 * 4096), None)]

    def job_x(self):
        return [("buffer_load_dwordx2 %s, %s, %s, s%d offen offset:%d" % (vr(XR + 2 * i4, 2), v(PF + 6), sr(SRD_X, 4), S_OUTOFF, 16 * i4), "pf") for i4 in range(4)]

    def all_jobs(self):
        jobs = {}
        t = 0
        for k in range(8):
            jobs[t] = self.job_wo(k); t += 1
        for j in range(32):
            jobs[t] = self.job_w1(j); t += 1
        for j in range(NW2A):
            jobs[t] = self.job_w2reg(vr(W2A + 8 * j, 4), vr(W2A + 8 * j + 4, 4)); t += 1
        for p in range(NW2B):
            jobs[t] = self.job_w2lds(p); t += 1
        assert t >= 56, t
        for p in range(NW2B, NW2B + NW2B2):
            jobs[t] = self.job_w2lds(p); t += 1
        jobs[t] = self.job_x(); t += 1
        assert t <= 64
        return jobs

    def p2(self):
        g = self
        RS, TS = KV_RS, KV_TS
        S_HEAD, S_QB, S_KV, S_M0B = S_A, S_B, S_C, S_D
        g.tiles()
        g.i("s_lshl_b32 s%d, s%d, 2" % (T0, S_XCD))
        g.i("s_lshr_b32 s%d, s%d, 3" % (T1, S_SLOT))
        g.i("s_add_u32 s%d, s%d, s%d" % (S_HEAD, T0, T1))
        g.i("s_and_b32 s%d, s%d, 7" % (S_QB, S_SLOT))
        QA, QB = 8, 12
        KF = [16, 20]
        VF = [24, 32]
        SS = [40, 56]
        PK = [72, 80]
        O = [88, 104]
        VVA, VVB = 121, 122
        T = 124
        g.i("v_and_b32 v1, 31, v0")
        g.i("v_min_u32 v1, 23, v1")
        g.i("v_lshrrev_b32 v2, 3, v1")
        g.i("v_mul_u32_u24 v2, %d, v2" % RS)
        g.i("v_and_b32 v3, 7, v1")
        g.i("v_mul_u32_u24 v3, %d, v3" % TS)
        g.i("v_add_u32 v2, v2, v3")
        for k in range(4):
            g.i("v_mov_b32 %s, 0x3f803f80" % v(16 + k))
        g.i("ds_write_b128 v2, %s offset:2048" % vr(16, 4))
        g.i("v_and_b32 v1, 31, v0")
        g.i("v_lshrrev_b32 v2, 5, v0")
        g.i("v_lshlrev_b32 v2, 8, v2")
        g.i("v_lshl_add_u32 v2, v1, 4, v2")
        g.i("v_add_u32 v2, 1024, v2")
        g.i("v_add_u32 v3, 512, v2")
        g.i("v_mov_b32 v4, 2048")
        g.i("v_cmp_gt_u32 vcc, 16, v1")
        g.i("v_cndmask_b32 %s, v4, v2, vcc" % v(VVA))
        g.i("v_cndmask_b32 %s, v4, v3, vcc" % v(VVB))
        g.prefetch_setup()
        g.i("s_lshl_b32 s%d, s%d, 17" % (T0, S_HEAD))
        g.i("s_lshl_b32 s%d, s%d, 12" % (T1, S_W))
        g.i("s_add_u32 s%d, s%d, s%d" % (S_KV, T0, T1))
        g.i("s_add_u32 s%d, s%d, 0x%x" % (S_KV, S_KV, WS_KV))
        g.i("s_mul_i32 s%d, s%d, %d" % (S_M0B, S_W, 2 * TS))
        g.i("s_lshl_b32 s%d, s%d, 16" % (T2, S_HEAD))
        g.i("s_lshl_b32 s%d, s%d, 13" % (T1, S_QB))
        g.i("s_add_u32 s%d, s%d, s%d" % (T2, T2, T1))
        g.i("s_lshl_b32 s%d, s%d, 11" % (T1, S_W))
        g.i("s_add_u32 s%d, s%d, s%d" % (T2, T2, T1))
        g.i("s_add_u32 s%d, s%d, 0x%x" % (T2, T2, WS_QF))
        g.i("s_lshl_b32 s%d, s%d, 8" % (T3, S_HEAD))
        g.i("s_add_u32 s%d, s%d, 0x%x" % (T3, T3, WS_KMAX))
        g.i("v_lshlrev_b32 v7, 2, v0")
        g.cnt_off(T7, S_HEAD, C_B1, shift=1)
        g.i("s_waitcnt lgkmcnt(0)")
        g.wait_cnt(T7, 16, 1)
        g.stamp(3)

        def issue_chunk(c):
            slot = (c % KV_N) * RS
            t = ("kv", c)
            g.i("s_add_u32 m0, s%d, %d" % (S_M0B, slot))
            g.i("buffer_load_dwordx4 %s, %s, s%d offen sc1 lds" % (v(VL16), sr(SRD_WS, 4), S_KV), tag=t)
            g.i("buffer_load_dwordx4 %s, %s, s%d offen offset:1024 sc1 lds" % (v(VL16), sr(SRD_WS, 4), S_KV), tag=t)
            g.i("s_add_u32 m0, s%d, %d" % (S_M0B, slot + 16))
            g.i("buffer_load_dwordx4 %s, %s, s%d offen offset:2048 sc1 lds" % (v(VL16), sr(SRD_WS, 4), S_KV), tag=t)
            g.i("buffer_load_dwordx4 %s, %s, s%d offen offset:3072 sc1 lds" % (v(VL16), sr(SRD_WS, 4), S_KV), tag=t)
            g.i("s_add_u32 s%d, s%d, 16384" % (S_KV, S_KV))
        g.i("buffer_load_dwordx4 %s, %s, %s, s%d offen sc1" % (vr(QA, 4), v(VL16), sr(SRD_WS, 4), T2), tag="q")
        g.i("buffer_load_dwordx4 %s, %s, %s, s%d offen offset:1024 sc1" % (vr(QB, 4), v(VL16), sr(SRD_WS, 4), T2), tag="q")
        issue_chunk(0)
        g.i("buffer_load_dword %s, v7, %s, s%d offen sc1" % (v(T), sr(SRD_WS, 4), T3), tag="km")
        issue_chunk(1)
        g.vm_wait(("kv", 0))
        g.i("s_barrier")
        g.stamp(4)
        jobs = g.all_jobs() if not self.opts.get("nopf") else {}

        def off(Tn):
            return ((Tn >> 3) % KV_N) * RS + (Tn & 7) * TS
        g.i("ds_read_b128 %s, %s offset:%d" % (vr(KF[0], 4), v(VL16), off(0)))
        g.i("s_waitcnt lgkmcnt(0)")
        g.mfma(SS[0], vr(KF[0], 4), vr(QA, 4), "0")
        o_started = [False, False]

        def pv(which, vreg, half):
            c = vr(O[which], 16) if (o_started[which] or half == 1) else "0"
            g.mfma(O[which], vr(vreg + 4 * half, 4), vr(PK[which] + 4 * half, 4), c)
            if half == 1:
                o_started[which] = True

        for Tn in range(64):
            for which in range(2):
                cur, nxt = SS[which], SS[1 - which]
                pkc = PK[which]
                if which == 0 and (Tn & 7) == 7 and Tn < 63:
                    c = Tn >> 3
                    g.vm_wait(("kv", c + 1))
                    g.i("s_barrier")
                    if c + 2 < 8:
                        issue_chunk(c + 2)
                ex = ["v_exp_f32 %s, %s" % (v(cur + k), v(cur + k)) for k in range(16)]
                cv = ["v_cvt_pk_bf16_f32 %s, %s, %s" % (v(pkc + k), v(cur + 2 * k), v(cur + 2 * k + 1)) for k in range(8)]
                if which == 0:
                    g.mfma(nxt, vr(KF[Tn & 1], 4), vr(QB, 4), "0")
                    if Tn + 1 < 64:
                        g.i("ds_read_b128 %s, %s offset:%d" % (vr(KF[(Tn + 1) & 1], 4), v(VL16), off(Tn + 1)))
                    g.i("ds_read_b128 %s, %s offset:%d" % (vr(VF[Tn & 1], 4), v(VVA), off(Tn)))
                    g.i("ds_read_b128 %s, %s offset:%d" % (vr(VF[Tn & 1] + 4, 4), v(VVB), off(Tn)))
                    do_pv = Tn > 0
                    pvw, pvv = 1, VF[(Tn - 1) & 1]
                else:
                    g.i("s_waitcnt lgkmcnt(0)")
                    if Tn + 1 < 64:
                        g.mfma(nxt, vr(KF[(Tn + 1) & 1], 4), vr(QA, 4), "0")
                    do_pv = True
                    pvw, pvv = 0, VF[Tn & 1]
                for k in (0, 1, 2, 3, 4):
                    g.i(ex[k])
                g.i(cv[0]); g.i(cv[1])
                if do_pv:
                    pv(pvw, pvv, 0)
                for k in (5, 6, 7, 8, 9):
                    g.i(ex[k])
                g.i(cv[2]); g.i(cv[3])
                if do_pv:
                    pv(pvw, pvv, 1)
                if which == 1 and Tn in jobs:
                    for t_, tag in jobs[Tn]:
                        g.i(t_, tag=tag)
                g.i(ex[10]); g.i(ex[11]); g.i(cv[4]); g.i(ex[12]); g.i(ex[13]); g.i(cv[5])
                g.i(ex[14]); g.i(ex[15]); g.i(cv[6]); g.i(cv[7])
        pv(1, VF[63 & 1], 0)
        pv(1, VF[63 & 1], 1)
        g.stamp(5)
        g.i("s_lshl_b32 s%d, s%d, 3" % (T0, S_QB))
        g.i("s_lshl_b32 s%d, s%d, 1" % (T1, S_W))
        g.i("s_add_u32 s%d, s%d, s%d" % (T0, T0, T1))
        g.i("s_lshl_b32 s%d, s%d, 5" % (T0, T0))
        g.i("s_add_u32 s%d, s%d, s%d" % (T0, T0, S_HEAD))
        g.i("s_lshl_b32 s%d, s%d, 10" % (T0, T0))
        g.i("s_add_u32 s%d, s%d, 0x%x" % (T0, T0, WS_OF))
        g.i("s_add_u32 s%d, s%d, 32768" % (T1, T0))
        g.cnt_off(T7, S_QB, C_B2)
        for which in range(2):
            o = O[which]
            g.i("v_rcp_f32 %s, %s" % (v(T), v(o + 8)))
            for r in range(4):
                g.pk("mul", o + 2 * r, T, o + 2 * r, bx=True)
            for r in range(4):
                g.i("v_cvt_pk_bf16_f32 %s, %s, %s" % (v(PK[which] + r), v(o + 2 * r), v(o + 2 * r + 1)))
            g.i("buffer_store_dwordx4 %s, %s, %s, s%d offen sc1" % (vr(PK[which], 4), v(VL16), sr(SRD_WS, 4), T0 + which))
        if self.opts.get("nopf"):
            for Tn in sorted(g.all_jobs()):
                if Tn == 58:
                    g.i("s_barrier")
                for t_, tag in g.all_jobs()[Tn]:
                    g.i(t_, tag=tag)
        g.arrive(T7, 1)

    def p3(self):
        g = self
        S_ST, S_KH = S_A, S_B
        g.i("s_lshr_b32 s%d, s%d, 1" % (S_ST, S_W))
        g.i("s_and_b32 s%d, s%d, 1" % (S_KH, S_W))
        OF = 8
        ACC = [72, 88]
        WF = [104, 112]
        VTR = 120
        T = 122
        g.tr_lane(7, 2)
        g.i("s_lshl_b32 s%d, s%d, 15" % (T1, S_KH))
        g.i("s_add_u32 s%d, s%d, %d" % (T1, T1, L_WO))
        g.tr_pair(VTR, 7, "s%d" % T1)
        g.i("s_lshl_b32 s%d, s%d, 1" % (T2, S_SB))
        g.i("s_add_u32 s%d, s%d, s%d" % (T2, T2, S_ST))
        g.i("s_lshl_b32 s%d, s%d, 15" % (T2, T2))
        g.i("s_lshl_b32 s%d, s%d, 14" % (T1, S_KH))
        g.i("s_add_u32 s%d, s%d, s%d" % (T2, T2, T1))
        g.i("s_add_u32 s%d, s%d, 0x%x" % (T2, T2, WS_OF))
        g.i("s_lshl_b32 s%d, s%d, 13" % (T3, S_SB))
        g.i("s_lshl_b32 s%d, s%d, 8" % (T1, S_ST))
        g.i("s_add_u32 s%d, s%d, s%d" % (T3, T3, T1))
        g.i("s_add_u32 s%d, s%d, 0x%x" % (S_F, T3, WS_STATS))
        g.i("s_lshl_b32 s%d, s%d, 1" % (T1, S_DB))
        g.i("s_add_u32 s%d, s%d, s%d" % (T1, T1, S_KH))
        g.i("s_lshl_b32 s%d, s%d, 9" % (T1, T1))
        g.i("s_add_u32 s%d, s%d, s%d" % (S_E, T1, S_F))
        g.i("s_lshl_b32 s%d, s%d, 1" % (S_D, S_DB))
        g.i("s_add_u32 s%d, s%d, s%d" % (S_D, S_D, S_KH))
        g.i("s_lshl_b32 s%d, s%d, 17" % (S_D, S_D))
        g.i("s_lshl_b32 s%d, s%d, 12" % (T1, S_SB))
        g.i("s_add_u32 s%d, s%d, s%d" % (S_D, S_D, T1))
        g.i("s_lshl_b32 s%d, s%d, 11" % (T1, S_ST))
        g.i("s_add_u32 s%d, s%d, s%d" % (S_D, S_D, T1))
        g.i("s_add_u32 s%d, s%d, 0x%x" % (S_D, S_D, WS_HT))
        g.cnt_off(T7, S_SB, C_B2, shift=2)
        g.stamp(6)
        g.wait_cnt(T7, 32, 1)
        g.stamp(7)
        for k in range(16):
            if k and k % 4 == 0:
                g.i("s_add_u32 s%d, s%d, 4096" % (T2, T2))
            g.i("buffer_load_dwordx4 %s, %s, %s, s%d offen offset:%d sc1" % (vr(OF + 4 * k, 4), v(VL16), sr(SRD_WS, 4), T2, (k % 4) * 1024), tag=("of", k))

        def wreads(k, b):
            for dt in range(2):
                for hh in range(2):
                    g.i("ds_read_b64_tr_b16 %s, %s offset:%d" % (vr(WF[b] + 4 * dt + 2 * hh, 2), v(VTR + dt), k * 2048 + hh * 1024))
        wreads(0, 0)
        g.i("s_xor_b32 s%d, s%d, 1" % (T0, S_W))
        g.i("s_lshl_b32 s%d, s%d, 12" % (T0, T0))
        g.i("v_add_u32 v1, s%d, %s" % (T0, v(VL16)))
        g.i("s_lshl_b32 s%d, s%d, 12" % (S_C, S_W))
        g.i("v_add_u32 v2, s%d, %s" % (S_C, v(VL16)))
        for k in range(16):
            b = k & 1
            if k < 15:
                wreads(k + 1, 1 - b)
                g.i("s_waitcnt lgkmcnt(4)")
            else:
                g.i("s_waitcnt lgkmcnt(0)")
            g.vm_wait(("of", k))
            for dt in range(2):
                c = "0" if k == 0 else vr(ACC[dt], 16)
                g.mfma(ACC[dt], vr(WF[b] + 4 * dt, 4), vr(OF + 4 * k, 4), c)
        labx = g.newlabel("L_kh1")
        labe = g.newlabel("L_khe")
        RX = 8
        g.unpack_bf16(RX + 16, XR, 8)
        g.fence()
        g.i("s_cmp_eq_u32 s%d, 1" % S_KH)
        g.i("s_cbranch_scc1 %s" % labx)
        for i4 in range(4):
            g.i("ds_write_b128 v1, %s offset:%d" % (vr(ACC[1] + 4 * i4, 4), i4 * 1024))
        for r in range(8):
            g.pk("add", RX + 16 + 2 * r, RX + 16 + 2 * r, ACC[0] + 2 * r)
        g.i("s_branch %s" % labe)
        g.label(labx)
        for i4 in range(4):
            g.i("ds_write_b128 v1, %s offset:%d" % (vr(ACC[0] + 4 * i4, 4), i4 * 1024))
        for r in range(8):
            g.pk("add", RX + 16 + 2 * r, RX + 16 + 2 * r, ACC[1] + 2 * r)
        g.label(labe)
        g.i("s_waitcnt lgkmcnt(0)")
        g.i("s_barrier")
        for i4 in range(4):
            g.i("ds_read_b128 %s, v2 offset:%d" % (vr(RX + 4 * i4, 4), i4 * 1024))
        g.i("s_waitcnt lgkmcnt(0)")
        A0 = RX + 16
        for r in range(8):
            g.pk("add", A0 + 2 * r, A0 + 2 * r, RX + 2 * r)
        H = HREG
        for r in range(8):
            g.i("v_cvt_pk_bf16_f32 %s, %s, %s" % (v(H + r), v(A0 + 2 * r), v(A0 + 2 * r + 1)))
        g.unpack_bf16(A0, H, 8)
        SP1, SP2 = 44, 46
        g.pk("add", SP1, A0, A0 + 2)
        g.pk("mul", SP2, A0, A0)
        for r in range(1, 8):
            if r > 1:
                g.pk("add", SP1, SP1, A0 + 2 * r)
            g.pk("fma", SP2, A0 + 2 * r, A0 + 2 * r, SP2)
        S1, S2 = 48, 49
        g.i("v_add_f32 %s, %s, %s" % (v(S1), v(SP1), v(SP1 + 1)))
        g.i("v_add_f32 %s, %s, %s" % (v(S2), v(SP2), v(SP2 + 1)))
        g.cross_half(S1, T)
        g.cross_half(S2, T)
        g.i("v_and_b32 v7, 31, v0")
        g.i("v_lshlrev_b32 v7, 3, v7")
        g.i("s_mov_b32 s%d, -1" % S_EXEC)
        g.i("s_mov_b32 s%d, 0" % (S_EXEC + 1))
        g.i("s_mov_b64 exec, %s" % sr(S_EXEC, 2))
        g.i("buffer_store_dwordx2 %s, v7, %s, s%d offen sc1" % (vr(S1, 2), sr(SRD_WS, 4), S_E))
        g.i("s_mov_b64 exec, -1")
        g.cnt_off(T7, S_SB, C_B3)
        g.stamp(8)
        g.arrive(T7, 2)
        g.i("v_and_b32 v1, 31, v0")
        g.i("v_lshlrev_b32 v1, 6, v1")
        g.i("v_lshrrev_b32 v2, 5, v0")
        g.i("v_lshl_add_u32 v1, v2, 3, v1")
        g.i("v_add_u32 %s, s%d, v1" % (v(50), S_C))
        g.i("v_lshlrev_b32 v1, 3, v2")
        g.i("v_bfe_u32 v3, v0, 2, 2")
        g.i("v_add_u32 v1, v1, v3")
        g.i("v_lshlrev_b32 v1, 6, v1")
        g.i("v_bfe_u32 v3, v0, 4, 1")
        g.i("v_lshl_add_u32 v1, v3, 5, v1")
        g.i("v_and_b32 v3, 3, v0")
        g.i("v_lshl_add_u32 v1, v3, 3, v1")
        g.i("v_add_u32 %s, s%d, v1" % (v(51), S_C))
        g.i("v_lshl_add_u32 v7, v2, 12, v7")
        g.wait_cnt(T7, 8, 2)
        g.stamp(9)
        G0 = 56
        for k in range(8):
            g.i("buffer_load_dwordx2 %s, v7, %s, s%d offen offset:%d sc1" % (vr(G0 + 2 * k, 2), sr(SRD_WS, 4), S_F, k * 512), tag="st")
        g.vm_wait("st")
        for k in range(1, 8):
            g.pk("add", G0, G0, G0 + 2 * k)
        g.cross_half(G0, T)
        g.cross_half(G0 + 1, T)
        MEAN, VAR, R1, RR = 124, 125, 123, 126
        g.i("v_mul_f32 %s, %s, %s" % (v(MEAN), hexf(1.0 / 512), v(G0)))
        g.i("v_mul_f32 %s, %s, %s" % (v(VAR), hexf(1.0 / 512), v(G0 + 1)))
        g.i("v_fma_f32 %s, -%s, %s, %s" % (v(VAR), v(MEAN), v(MEAN), v(VAR)))
        g.i("v_max_f32 %s, 0, %s" % (v(VAR), v(VAR)))
        g.i("v_add_f32 %s, %s, %s" % (v(R1), hexf(1e-5), v(VAR)))
        g.i("v_rsq_f32 %s, %s" % (v(R1), v(R1)))
        g.i("v_mul_f32 %s, %s, %s" % (v(RR), v(R1), v(R1)))
        g.i("v_mul_f32 %s, %s, %s" % (v(RR), v(RR), v(VAR)))
        g.i("v_add_f32 %s, %s, %s" % (v(RR), hexf(1e-5), v(RR)))
        g.i("v_rsq_f32 %s, %s" % (v(RR), v(RR)))
        g.i("v_mul_f32 %s, %s, %s" % (v(RR), v(RR), v(R1)))
        for r in range(8):
            g.i("v_pk_add_f32 %s, %s, %s op_sel_hi:[1,0] neg_lo:[0,1] neg_hi:[0,1]" % (vr(A0 + 2 * r, 2), vr(A0 + 2 * r, 2), vr(MEAN, 2)))
        for r in range(8):
            g.pk("mul", A0 + 2 * r, RR, A0 + 2 * r, bx=True)
        PKD = 8
        for r in range(8):
            g.i("v_cvt_pk_bf16_f32 %s, %s, %s" % (v(PKD + r), v(A0 + 2 * r), v(A0 + 2 * r + 1)))
        for i4 in range(4):
            g.i("ds_write_b64 v50, %s offset:%d" % (vr(PKD + 2 * i4, 2), 16 * i4))
        FR = 16
        for j in range(2):
            for hh in range(2):
                g.i("ds_read_b64_tr_b16 %s, v51 offset:%d" % (vr(FR + 4 * j + 2 * hh, 2), j * 1024 + hh * 256))
        g.cnt_off(T7, S_DB, C_B4)
        g.i("s_waitcnt lgkmcnt(0)")
        for j in range(2):
            g.i("buffer_store_dwordx4 %s, %s, %s, s%d offen offset:%d sc1" % (vr(FR + 4 * j, 4), v(VL16), sr(SRD_WS, 4), S_D, j * 1024))
        g.arrive(T7, 2)

    def reduce4(self, acc):
        g = self
        done = g.newlabel("L_red")
        g.fence()
        for w in range(4):
            nxt = g.newlabel("L_rw")
            if w < 3:
                g.i("s_cmp_lg_u32 s%d, %d" % (S_W, w))
                g.i("s_cbranch_scc1 %s" % nxt)
            for d in range(4):
                if d == w:
                    continue
                sl = (w - d - 1) & 3
                base = L_SCR + d * 12288 + sl * 4096
                g.i("v_add_u32 v1, %d, %s" % (base, v(VL16)))
                for i4 in range(4):
                    g.i("ds_write_b128 v1, %s offset:%d" % (vr(acc + 16 * d + 4 * i4, 4), i4 * 1024))
            if w != 0:
                for r in range(8):
                    g.i("v_pk_add_f32 %s, %s, 0 op_sel_hi:[1,0]" % (vr(acc + 2 * r, 2), vr(acc + 16 * w + 2 * r, 2)))
            if w < 3:
                g.i("s_branch %s" % done)
                g.label(nxt)
        g.label(done)
        g.i("s_mul_i32 s%d, s%d, 12288" % (T0, S_W))
        g.i("s_add_u32 s%d, s%d, %d" % (T0, T0, L_SCR))
        g.i("v_add_u32 v1, s%d, %s" % (T0, v(VL16)))
        g.i("s_waitcnt lgkmcnt(0)")
        g.i("s_barrier")
        R = 72
        for sl in range(3):
            for i4 in range(4):
                g.i("ds_read_b128 %s, v1 offset:%d" % (vr(R + 16 * sl + 4 * i4, 4), sl * 4096 + i4 * 1024))
        g.i("s_waitcnt lgkmcnt(4)")
        for r in range(8):
            g.pk("add", R + 2 * r, R + 2 * r, R + 16 + 2 * r)
        for r in range(8):
            g.pk("add", acc + 2 * r, acc + 2 * r, R + 2 * r)
        g.i("s_waitcnt lgkmcnt(0)")
        for r in range(8):
            g.pk("add", acc + 2 * r, acc + 2 * r, R + 32 + 2 * r)

    def p4(self):
        g = self
        skip = "L_p4_skip"
        g.i("s_cmp_ge_u32 s%d, 22" % S_SLOT)
        g.i("s_cbranch_scc1 %s" % skip)
        ACC = 8
        WF = [72, 80]
        ARING, NA = 88, 5
        B1 = PF
        VTR, VST = 144, 146
        g.i("s_lshr_b32 s%d, s%d, 1" % (T0, S_W))
        g.i("s_lshl_b32 s%d, s%d, 6" % (T0, T0))
        g.i("s_lshl_b32 s%d, s%d, 7" % (T1, S_FB))
        g.i("s_add_u32 s%d, s%d, s%d" % (T0, T0, T1))
        g.i("v_lshrrev_b32 v1, 5, v0")
        g.i("v_lshlrev_b32 v1, 3, v1")
        B1 = 120
        for i4 in range(4):
            g.i("buffer_load_dwordx2 %s, v1, %s, s%d offen offset:%d" % (vr(B1 + 2 * i4, 2), sr(SRD_B1, 4), T0, 16 * i4), tag="b1")
        NA = 4
        S_A0, S_A1 = S_D, S_E
        g.i("s_lshl_b32 s%d, s%d, 18" % (T0, S_DB4))
        g.i("s_lshl_b32 s%d, s%d, 15" % (T1, S_W))
        g.i("s_add_u32 s%d, s%d, s%d" % (T0, T0, T1))
        g.i("s_add_u32 s%d, s%d, 0x%x" % (S_A0, T0, WS_HT))
        g.i("s_add_u32 s%d, s%d, 0x20000" % (S_A1, S_A0))
        g.tr_lane(7, 3)
        g.i("s_lshl_b32 s%d, s%d, 13" % (S_F, S_W))
        g.tr_pair(VTR, 7, "s%d" % S_F)
        g.i("v_add_u32 %s, s%d, %s" % (v(VST), S_F, v(VL16)))

        def actreg(j, t):
            return vr(ARING + 8 * j + 4 * t, 4) if j < NA else ar(8 * (j - NA) + 4 * t, 4)

        def act(j):
            q = j % 4
            for t in range(2):
                g.i("buffer_load_dwordx4 %s, %s, %s, s%d offen offset:%d sc1" % (actreg(j, t), v(VL16), sr(SRD_WS, 4), (S_A0, S_A1)[t], q * 1024), tag=("p4", j))
            if q == 3:
                g.i("s_add_u32 s%d, s%d, 4096" % (S_A0, S_A0))
                g.i("s_add_u32 s%d, s%d, 4096" % (S_A1, S_A1))

        def wr(j):
            for hh in range(2):
                g.i("ds_write_b128 %s, %s offset:%d" % (v(VST), ar(8 * j + 4 * hh, 4), (j % 4) * 2048 + hh * 1024))

        def rd(j):
            for t in range(2):
                for hh in range(2):
                    g.i("ds_read_b64_tr_b16 %s, %s offset:%d" % (vr(WF[j & 1] + 4 * t + 2 * hh, 2), v(VTR + t), (j % 4) * 2048 + hh * 512))
        wr(0); wr(1); rd(0)
        g.cnt_off(T7, S_DB4, C_B4)
        g.vm_wait("b1")
        g.stamp(10)
        g.wait_cnt(T7, 32, 1)
        g.stamp(11)
        for j in range(NA):
            act(j)
        for j in range(32):
            if j + 2 < 32:
                wr(j + 2)
            if j + 1 < 32:
                rd(j + 1)
            n = (2 if j + 2 < 32 else 0) + (4 if j + 1 < 32 else 0)
            g.i("s_waitcnt lgkmcnt(%d)" % n)
            g.vm_wait(("p4", j))
            for ft in range(2):
                for dt in range(2):
                    acc = ACC + 16 * (2 * ft + dt)
                    g.mfma(acc, vr(WF[j & 1] + 4 * ft, 4), actreg(j, dt), "0" if j == 0 else vr(acc, 16))
            if j + NA < 32:
                act(j + NA)
        g.stamp(12)
        g.reduce4(ACC)
        U, E = ACC, 72
        g.unpack_bf16(E, B1, 8)
        for r in range(8):
            g.pk("add", U + 2 * r, U + 2 * r, E + 2 * r)
        c1 = -2.0 * 0.7978845608028654 * 1.4426950408889634
        c2 = c1 * 0.044715
        g.i("v_mov_b32 v2, %s" % hexf(c1))
        g.i("v_mov_b32 v4, %s" % hexf(c2))
        for r in range(8):
            g.pk("mul", E + 2 * r, U + 2 * r, U + 2 * r)
        for r in range(8):
            g.i("v_pk_fma_f32 %s, %s, v[4:5], v[2:3] op_sel_hi:[1,0,0]" % (vr(E + 2 * r, 2), vr(E + 2 * r, 2)))
        for r in range(8):
            g.pk("mul", E + 2 * r, E + 2 * r, U + 2 * r)
        for r in range(16):
            g.i("v_exp_f32 %s, %s" % (v(E + r), v(E + r)))
        for r in range(8):
            g.i("v_pk_add_f32 %s, %s, 1.0 op_sel_hi:[1,0]" % (vr(E + 2 * r, 2), vr(E + 2 * r, 2)))
        for r in range(16):
            g.i("v_rcp_f32 %s, %s" % (v(E + r), v(E + r)))
        for r in range(8):
            g.pk("mul", U + 2 * r, U + 2 * r, E + 2 * r)
        P = 96
        for r in range(8):
            g.i("v_cvt_pk_bf16_f32 %s, %s, %s" % (v(P + r), v(U + 2 * r), v(U + 2 * r + 1)))
        nz = g.newlabel("L_nz")
        g.i("s_lshl_b32 s%d, s%d, 1" % (T0, S_FB))
        g.i("s_lshr_b32 s%d, s%d, 1" % (T1, S_W))
        g.i("s_add_u32 s%d, s%d, s%d" % (T0, T0, T1))
        g.i("s_cmp_lg_u32 s%d, 43" % T0)
        g.i("s_cbranch_scc1 %s" % nz)
        for r in range(8):
            g.i("v_mov_b32 %s, 0" % v(P + r))
        g.label(nz)
        g.i("s_lshl_b32 s%d, s%d, 11" % (T0, T0))
        g.i("s_lshl_b32 s%d, s%d, 1" % (T1, S_DB4))
        g.i("s_and_b32 s%d, s%d, 1" % (T2, S_W))
        g.i("s_add_u32 s%d, s%d, s%d" % (T1, T1, T2))
        g.i("s_mul_i32 s%d, s%d, %d" % (T1, T1, 88 * 1024))
        g.i("s_add_u32 s%d, s%d, s%d" % (T0, T0, T1))
        g.i("s_add_u32 s%d, s%d, 0x%x" % (T0, T0, WS_UF))
        g.cnt_off(T7, S_DB4, C_B5)
        for j in range(2):
            g.i("buffer_store_dwordx4 %s, %s, %s, s%d offen offset:%d sc1" % (vr(P + 4 * j, 4), v(VL16), sr(SRD_WS, 4), T0, j * 1024))
        g.arrive(T7, 1)
        g.label(skip)
        g.fence()

    def p5(self):
        g = self
        ACC = 8
        WF = [72, 80]
        VTR, VTB, VTB2, VST, B2 = 88, 90, 92, 94, 120
        CREG = 240
        for j in range(NW2C):
            for t_, tag in g.job_w2reg(ar(CREG + 8 * j, 4), ar(CREG + 8 * j + 4, 4)):
                g.i(t_, tag="w2c" if tag else None)
        g.i("s_lshr_b32 s%d, s%d, 1" % (T0, S_W))
        g.i("s_lshl_b32 s%d, s%d, 6" % (T0, T0))
        g.i("s_lshl_b32 s%d, s%d, 7" % (T1, S_SB))
        g.i("s_add_u32 s%d, s%d, s%d" % (T0, T0, T1))
        g.i("v_and_b32 v1, 31, v0")
        g.i("v_lshlrev_b32 v1, 1, v1")
        g.i("buffer_load_ushort %s, v1, %s, s%d offen" % (v(B2), sr(SRD_B2, 4), T0), tag="w2c")
        S_A0, S_A1 = S_D, S_E
        g.i("s_mul_i32 s%d, s%d, %d" % (T0, S_DB, 2 * 88 * 1024))
        g.i("s_mul_i32 s%d, s%d, %d" % (T1, S_W, 22 * 1024))
        g.i("s_add_u32 s%d, s%d, s%d" % (T0, T0, T1))
        g.i("s_add_u32 s%d, s%d, 0x%x" % (S_A0, T0, WS_UF))
        g.i("s_add_u32 s%d, s%d, %d" % (S_A1, S_A0, 88 * 1024))
        g.tr_lane(7, 2)
        g.i("s_lshl_b32 s%d, s%d, 13" % (S_F, S_W))
        g.tr_pair(VTR, 7, "s%d" % S_F)
        g.i("v_add_u32 %s, s%d, %s" % (v(VST), S_F, v(VL16)))
        g.i("s_mul_i32 s%d, s%d, %d" % (T0, S_W, NW2B * 2048))
        g.i("s_add_u32 s%d, s%d, %d" % (T0, T0, L_W2B))
        g.tr_pair(VTB, 7, "s%d" % T0)
        g.i("s_lshl_b32 s%d, s%d, 12" % (T0, S_W))
        g.i("s_add_u32 s%d, s%d, %d" % (T0, T0, L_W2B2))
        g.tr_pair(VTB2, 7, "s%d" % T0)
        NK = 22

        def staged(j):
            return j < NW2A or j >= NW2A + NW2B + NW2B2

        def wr(j):
            if not staged(j):
                return 0
            for hh in range(2):
                src = vr(W2A + 8 * j + 4 * hh, 4) if j < NW2A else ar(CREG + 8 * (j - (NK - NW2C)) + 4 * hh, 4)
                g.i("ds_write_b128 %s, %s offset:%d" % (v(VST), src, (j % 4) * 2048 + hh * 1024))
            return 2

        def rd(j):
            if staged(j):
                reg, o = VTR, (j % 4) * 2048
            elif j < NW2A + NW2B:
                reg, o = VTB, (j - NW2A) * 2048
            else:
                reg, o = VTB2, (j - NW2A - NW2B) * 2048
            for t in range(2):
                for hh in range(2):
                    g.i("ds_read_b64_tr_b16 %s, %s offset:%d" % (vr(WF[j & 1] + 4 * t + 2 * hh, 2), v(reg + t), o + hh * 1024))
            return 4
        wr(0); wr(1); rd(0)
        g.cnt_off(T7, S_DB, C_B5)
        g.vm_wait("w2c")
        g.stamp(13)
        g.wait_cnt(T7, 22, 1)
        g.stamp(14)
        for j in range(NK):
            q = j % 4
            for t in range(2):
                g.i("buffer_load_dwordx4 %s, %s, %s, s%d offen offset:%d sc1" % (ar(8 * j + 4 * t, 4), v(VL16), sr(SRD_WS, 4), (S_A0, S_A1)[t], q * 1024), tag=("p5", j))
            if q == 3:
                g.i("s_add_u32 s%d, s%d, 4096" % (S_A0, S_A0))
                g.i("s_add_u32 s%d, s%d, 4096" % (S_A1, S_A1))
            if j == 5:
                break
        nissued = 6
        for j in range(NK):
            n = 0
            if j + 2 < NK:
                n += wr(j + 2)
            if j + 1 < NK:
                n += rd(j + 1)
            g.i("s_waitcnt lgkmcnt(%d)" % n)
            g.vm_wait(("p5", j))
            for st in range(2):
                for dt in range(2):
                    acc = ACC + 16 * (2 * st + dt)
                    g.mfma(acc, ar(8 * j + 4 * dt, 4), vr(WF[j & 1] + 4 * st, 4), "0" if j == 0 else vr(acc, 16))
            if nissued < NK:
                jj = nissued
                q = jj % 4
                for t in range(2):
                    g.i("buffer_load_dwordx4 %s, %s, %s, s%d offen offset:%d sc1" % (ar(8 * jj + 4 * t, 4), v(VL16), sr(SRD_WS, 4), (S_A0, S_A1)[t], q * 1024), tag=("p5", jj))
                if q == 3:
                    g.i("s_add_u32 s%d, s%d, 4096" % (S_A0, S_A0))
                    g.i("s_add_u32 s%d, s%d, 4096" % (S_A1, S_A1))
                nissued += 1
        g.stamp(15)
        g.reduce4(ACC)
        H = HREG
        U, E = ACC, 72
        g.i("v_lshlrev_b32 v2, 16, %s" % v(B2))
        g.unpack_bf16(E, H, 8)
        for r in range(8):
            g.i("v_pk_add_f32 %s, %s, v[2:3] op_sel_hi:[1,0]" % (vr(U + 2 * r, 2), vr(U + 2 * r, 2)))
        for r in range(8):
            g.pk("add", U + 2 * r, U + 2 * r, E + 2 * r)
        P = 96
        for r in range(8):
            g.i("v_cvt_pk_bf16_f32 %s, %s, %s" % (v(P + r), v(U + 2 * r), v(U + 2 * r + 1)))
        g.i("v_and_b32 v1, 31, v0")
        g.i("v_lshlrev_b32 v1, 10, v1")
        g.i("v_lshrrev_b32 v2, 5, v0")
        g.i("v_lshl_add_u32 v1, v2, 4, v1")
        for q in range(2):
            g.i("v_permlane32_swap_b32 %s, %s" % (v(P + 4 * q), v(P + 4 * q + 2)))
            g.i("v_permlane32_swap_b32 %s, %s" % (v(P + 4 * q + 1), v(P + 4 * q + 3)))
        for q in range(2):
            g.i("buffer_store_dwordx4 %s, v1, %s, s%d offen offset:%d" % (vr(P + 4 * q, 4), sr(SRD_OUT, 4), S_OUTOFF, 32 * q))

    def build(self):
        g = self
        phases = [g.p1, g.p2, g.p3, g.p4, g.p5]
        for k, ph in enumerate(phases):
            ph()
            if self.stop_after == k + 1:
                break
        g.vm_wait_all()
        g.stamp(16)
        g.vm_wait_all()
        g.i("s_endpgm")
        g.label("L_exit")
        g.i("s_endpgm")
        return g.text()


HEADER = """; Fused pre-LN MHA block + MLP-Mixer token MLP, one persistent launch (256 workgroups x 4 waves).
; @launch grid=(256,1,1) block=(256,1,1) lds=163840
.amdgcn_target "amdgcn-amd-amdhsa--gfx950"
.text
.globl {name}_kernel
.p2align 8
.type {name}_kernel,@function
{name}_kernel:
"""
FOOTER = """.section .rodata,"a"
.p2align 6
.amdhsa_kernel {name}_kernel
  .amdhsa_next_free_vgpr 512
  .amdhsa_next_free_sgpr 102
  .amdhsa_accum_offset 256
  .amdhsa_group_segment_fixed_size 0
  .amdhsa_kernarg_size 88
  .amdhsa_user_sgpr_count 2
  .amdhsa_user_sgpr_kernarg_segment_ptr 1
  .amdhsa_system_sgpr_workgroup_id_x 1
.end_amdhsa_kernel
"""


def generate(stop_after=99, opts=None):
    g = Gen(stop_after, opts)
    body = g.build()
    return HEADER.format(name=NAME) + body + FOOTER.format(name=NAME), g


if __name__ == "__main__":
    out = sys.argv[1] if len(sys.argv) > 1 else "cdna_kernels/%s.s" % NAME
    stop = int(sys.argv[2]) if len(sys.argv) > 2 else 99
    opts = {}
    for a_ in sys.argv[3:]:
        k_, _, v_ = a_.partition("=")
        opts[k_] = int(v_) if v_ else 1
    txt, g = generate(stop, opts)
    open(out, "w").write(txt)
    print("wrote %s: %d lines, %d bytes, %d nop states" % (out, txt.count("\n"), len(txt), g.nops))
```

```python
import sys
import struct
sys.path.insert(0, "work")
from asmlib import Asm, v, vr, a, ar, s, sr

NAME = "sequential_preLN__mha_block__mixer_token_mlp__prompt"

WS_CNT = 0x0
WS_STATS = 0x8000
WS_KMAX = 0x48000
WS_QF = 0x100000
WS_KV = 0x300000
WS_OF = 0x800000
WS_HT = 0xA00000
WS_UF = 0xC00000
WS_DBG = 0xE00000
WS_SIZE = 0x1000000
C_B1, C_B2, C_B3, C_B4, C_B5 = 0, 16, 24, 56, 64

KV_RS, KV_TS, KV_N = 16512, 2064, 3
L_WO = 49536
L_W2B = 115072
L_W2B2 = 33024
L_MISC = 156032
L_SCR = L_WO

S_W = 3
SRD_X, SRD_WQ, SRD_WO, SRD_W1, SRD_W2, SRD_B1, SRD_B2, SRD_OUT, SRD_WS = 8, 12, 16, 20, 24, 28, 32, 36, 40
S_DBG = 44
S_XCD = 46
S_SLOT = 47
T0, T1, T2, T3, T4, T5, T6, T7 = 48, 49, 50, 51, 52, 53, 54, 55
S_A, S_B, S_C, S_D, S_E, S_F = 56, 57, 58, 59, 60, 61
S_SB, S_DB, S_FB, S_DB4, S_OUTOFF = 62, 63, 64, 65, 66
S_EXEC = 74
S_SPIN = 76
S_PWO, S_PW1, S_PW2, S_PM0 = 84, 85, 86, 87
SPIN_MAX = 0x40000

VL16 = 6
HREG = 128
PF = 136
XR = 144
W2A = 152
NW2A, NW2B, NW2B2, NW2C = 13, 5, 2, 2


def f2u(x):
    return struct.unpack("<I", struct.pack("<f", x))[0]


def hexf(x):
    return "0x%08x" % f2u(x)


class Gen(Asm):
    def __init__(self, stop_after=99, opts=None):
        super().__init__()
        self.stop_after = stop_after
        self.opts = opts or {}

    def wave0_begin(self):
        lab = self.newlabel("L_w0")
        self.i("s_cmp_lg_u32 s%d, 0" % S_W)
        self.i("s_cbranch_scc1 %s" % lab)
        return lab

    def arrive(self, off_sgpr, vt):
        self.vm_wait_all()
        self.i("s_barrier")
        lab = self.wave0_begin()
        self.i("s_mov_b64 exec, 1")
        self.i("v_mov_b32 %s, 1" % v(vt))
        self.i("v_mov_b32 %s, s%d" % (v(vt + 1), off_sgpr))
        self.i("buffer_atomic_add %s, %s, %s, 0 offen sc1" % (v(vt), v(vt + 1), sr(SRD_WS, 4)))
        self.vm.pop()
        self.i("s_mov_b64 exec, -1")
        self.label(lab)

    def wait_cnt(self, off_sgpr, target, vt):
        lab = self.wave0_begin()
        loop = self.newlabel("L_poll")
        self.i("v_mov_b32 %s, s%d" % (v(vt + 1), off_sgpr))
        self.i("s_mov_b32 s%d, 0" % S_SPIN)
        self.label(loop)
        self.i("buffer_load_dword %s, %s, %s, 0 offen sc1" % (v(vt), v(vt + 1), sr(SRD_WS, 4)))
        self.vm.pop()
        self.i("s_add_u32 s%d, s%d, 1" % (S_SPIN, S_SPIN))
        self.i("s_waitcnt vmcnt(0)")
        self.i("v_readfirstlane_b32 s%d, %s" % (T0, v(vt)))
        self.i("s_cmp_ge_u32 s%d, %d" % (T0, target))
        self.i("s_cbranch_scc1 %s" % lab)
        self.i("s_cmp_lt_u32 s%d, 0x%x" % (S_SPIN, SPIN_MAX))
        self.i("s_cbranch_scc1 %s" % loop)
        self.label(lab)
        self.i("s_barrier")

    def cross_half(self, reg, tmp, op="v_add_f32"):
        self.i("v_mov_b32 %s, %s" % (v(tmp), v(reg)))
        self.i("v_permlane32_swap_b32 %s, %s" % (v(reg), v(tmp)))
        self.i("%s %s, %s, %s" % (op, v(reg), v(reg), v(tmp)))

    def stamp(self, idx):
        if not self.opts.get("stamps"):
            return
        g = self
        lab = g.wave0_begin()
        g.i("s_memtime s[80:81]")
        g.i("s_lshl_b32 s82, s2, 7")
        g.i("s_add_u32 s82, s82, %d" % (WS_DBG + idx * 4))
        g.i("s_waitcnt lgkmcnt(0)")
        g.i("v_mov_b32 v4, s80")
        g.i("v_mov_b32 v5, 0")
        g.i("buffer_store_dword v4, v5, %s, s82 offen" % sr(SRD_WS, 4))
        g.vm.pop()
        g.label(lab)

    def cnt_off(self, dst, idx_sgpr, cbase, shift=0):
        g = self
        if shift:
            g.i("s_lshr_b32 s%d, s%d, %d" % (dst, idx_sgpr, shift))
            g.i("s_lshl_b32 s%d, s%d, 8" % (dst, dst))
        else:
            g.i("s_lshl_b32 s%d, s%d, 8" % (dst, idx_sgpr))
        g.i("s_add_u32 s%d, s%d, %d" % (dst, dst, WS_CNT + cbase * 256))

    def srd(self, dst, src, nbytes):
        g = self
        g.i("s_mov_b32 s%d, s%d" % (dst, src))
        g.i("s_and_b32 s%d, s%d, 0xffff" % (dst + 1, src + 1))
        g.i("s_mov_b32 s%d, 0x%x" % (dst + 2, nbytes))
        g.i("s_mov_b32 s%d, 0x20000" % (dst + 3))

    def pk(self, op, d, x, y, z=None, bx=False, by=False, negx=False):
        n = 3 if z is not None else 2
        t = "v_pk_%s_f32 %s, %s, %s" % (op, vr(d, 2), vr(x, 2), vr(y, 2))
        if z is not None:
            t += ", %s" % vr(z, 2)
        if bx or by:
            sel = [0 if bx else 1, 0 if by else 1] + ([1] if n == 3 else [])
            t += " op_sel_hi:[%s]" % ",".join(map(str, sel))
        if negx:
            ng = [1, 0] + ([0] if n == 3 else [])
            t += " neg_lo:[%s] neg_hi:[%s]" % (",".join(map(str, ng)), ",".join(map(str, ng)))
        self.i(t)

    def unpack_bf16(self, dst, src, n):
        for r in range(n):
            self.i("v_lshlrev_b32 %s, 16, %s" % (v(dst + 2 * r), v(src + r)))
            self.i("v_and_b32 %s, 0xffff0000, %s" % (v(dst + 2 * r + 1), v(src + r)))

    def mfma(self, d, am, bm, c):
        self.i("v_mfma_f32_32x32x16_bf16 %s, %s, %s, %s" % (vr(d, 16), am, bm, c))

    def p1(self):
        g = self
        g.i("s_cmp_ge_u32 s2, 256")
        g.i("s_cbranch_scc1 L_exit")
        if self.opts.get("dbgt"):
            g.i("s_memtime s[70:71]")
            g.i("s_memrealtime s[72:73]")
        g.i("s_load_dwordx16 s[48:63], s[0:1], 0")
        g.i("s_load_dwordx4 s[64:67], s[0:1], 64")
        g.i("s_load_dwordx2 s[68:69], s[0:1], 80")
        g.i("v_lshrrev_b32 v1, 6, v0")
        g.i("v_and_b32 v0, 63, v0")
        g.i("v_readfirstlane_b32 s%d, v1" % S_W)
        g.i("s_and_b32 s%d, s2, 7" % S_XCD)
        g.i("s_lshr_b32 s%d, s2, 3" % S_SLOT)
        g.i("v_lshlrev_b32 %s, 4, v0" % v(VL16))
        SLOT = 28672
        CS = L_MISC
        ST = L_MISC + 512
        S_RB, S_CB = 90, 91
        S_XO, S_WOFF, S_MX, S_MW = 92, 93, 94, 95
        U0, U1 = 96, 97
        LOOK = self.opts.get("p1look", 3)
        g.i("s_lshr_b32 s%d, s%d, 1" % (U0, S_XCD))
        g.i("s_lshl_b32 s%d, s%d, 2" % (U0, U0))
        g.i("s_lshr_b32 s%d, s%d, 3" % (U1, S_SLOT))
        g.i("s_add_u32 s%d, s%d, s%d" % (S_RB, U0, U1))
        g.i("s_and_b32 s%d, s%d, 1" % (U0, S_XCD))
        g.i("s_lshl_b32 s%d, s%d, 3" % (U0, U0))
        g.i("s_and_b32 s%d, s%d, 7" % (U1, S_SLOT))
        g.i("s_add_u32 s%d, s%d, s%d" % (S_CB, U0, U1))
        g.i("s_lshl_b32 s%d, s%d, 17" % (U0, S_RB))
        g.i("s_lshl_b32 s%d, s%d, 15" % (U1, S_W))
        g.i("s_add_u32 s%d, s%d, s%d" % (S_XO, U0, U1))
        g.i("s_mov_b32 s%d, 0" % S_WOFF)
        g.i("s_lshl_b32 s%d, s%d, 12" % (S_MX, S_W))
        g.i("s_mul_i32 s%d, s%d, 3072" % (S_MW, S_W))
        g.i("s_add_u32 s%d, s%d, 16384" % (S_MW, S_MW))
        VXD = 8
        VWD = 12
        VXR = 16
        VWR = 28
        ONES = 40
        XF = [44, 48]
        WF = [52, 64]
        AQ, AK, AV = 80, 96, 112
        S1, S2 = 42, 43
        CSA = 76
        FLAG = 79
        T = 128
        g.i("v_lshrrev_b32 v1, 3, v0")
        g.i("v_lshlrev_b32 v1, 10, v1")
        g.i("v_and_b32 v2, 7, v0")
        g.i("v_lshrrev_b32 v3, 4, v0")
        for q in range(4):
            g.i("v_add_u32 v4, %d, v3" % (4 * (q & 1)))
            g.i("v_xor_b32 v4, v2, v4")
            g.i("v_lshlrev_b32 v4, 4, v4")
            g.i("v_add3_u32 %s, v4, v1, s%d" % (v(VXD + q), U0) if False else "v_add_u32 v4, v1, v4")
            g.i("v_add_u32 %s, %d, v4" % (v(VXD + q), q * 7168))
        g.i("v_lshrrev_b32 v1, 2, v0")
        g.i("s_lshl_b32 s%d, s%d, 4" % (U0, S_W))
        g.i("v_add_u32 v1, s%d, v1" % U0)
        g.i("v_mul_u32_u24 v1, 3072, v1")
        g.i("v_and_b32 v2, 3, v0")
        g.i("v_lshlrev_b32 v2, 4, v2")
        g.i("s_lshl_b32 s%d, s%d, 6" % (U1, S_CB))
        g.i("v_add3_u32 %s, v1, v2, s%d" % (v(VWD), U1))
        g.i("s_waitcnt lgkmcnt(0)")
        g.srd(SRD_X, 48, 2048 * 512 * 2)
        g.srd(SRD_WQ, 50, 512 * 1536 * 2)

        def chunk_parts(c):
            slot = (c % 5) * SLOT
            t = ("p1", c)
            X = lambda q: ("buffer_load_dwordx4 %s, %s, s%d offen offset:%d lds" % (v(VXD + q), sr(SRD_X, 4), S_XO, q * 1024), t)
            W = lambda gi: ("buffer_load_dwordx4 %s, %s, s%d offen offset:%d lds" % (v(VWD), sr(SRD_WQ, 4), S_WOFF, gi * 1024), t)
            return [
                [("s_add_u32 m0, s%d, %d" % (S_MX, slot), None), X(0), X(1)],
                [X(2), X(3), ("s_add_u32 s%d, s%d, 128" % (S_XO, S_XO), None)],
                [("s_add_u32 m0, s%d, %d" % (S_MW, slot), None), W(0), W(1)],
                [W(2), ("s_add_u32 s%d, s%d, %d" % (S_WOFF, S_WOFF, 64 * 3072), None)],
            ]

        def emit(grp):
            for t, tag in grp:
                g.i(t, tag=tag)
        for part in chunk_parts(0):
            emit(part)
        g.srd(SRD_WS, 68, WS_SIZE)
        g.i("s_mov_b32 s%d, s66" % S_DBG)
        g.i("s_mov_b32 s%d, s67" % (S_DBG + 1))
        noinit = g.newlabel("L_noinit")
        g.i("s_or_b32 s%d, s2, s%d" % (U0, S_W))
        g.i("s_cmp_lg_u32 s%d, 0" % U0)
        g.i("s_cbranch_scc1 %s" % noinit)
        g.i("v_lshlrev_b32 v1, 8, v0")
        g.i("v_mov_b32 v2, 0")
        g.i("buffer_store_dword v2, v1, %s, 0 offen sc0 sc1" % sr(SRD_WS, 4)); g.vm.pop()
        g.i("v_add_u32 v1, 0x4000, v1")
        g.i("buffer_store_dword v2, v1, %s, 0 offen sc0 sc1" % sr(SRD_WS, 4)); g.vm.pop()
        g.label(noinit)
        for c in range(1, LOOK):
            for part in chunk_parts(c):
                emit(part)
        g.srd(SRD_WO, 52, 512 * 512 * 2)
        g.srd(SRD_W1, 56, 2048 * 1376 * 2)
        g.srd(SRD_B1, 58, 1376 * 2)
        g.srd(SRD_W2, 60, 1376 * 2048 * 2)
        g.srd(SRD_B2, 62, 2048 * 2)
        g.srd(SRD_OUT, 64, 2048 * 512 * 2)
        g.stamp(0)
        g.i("v_and_b32 v1, 31, v0")
        g.i("v_lshrrev_b32 v2, 5, v0")
        g.i("v_lshrrev_b32 v3, 1, v1")
        g.i("v_and_b32 v3, 7, v3")
        g.i("v_lshlrev_b32 v4, 7, v1")
        g.i("v_add_u32 v4, s%d, v4" % S_MX)
        g.i("v_and_b32 v1, 15, v0")
        g.i("v_lshrrev_b32 v1, 2, v1")
        g.i("v_lshl_add_u32 v1, v2, 3, v1")
        g.i("v_lshlrev_b32 v1, 6, v1")
        g.i("v_bfe_u32 v5, v0, 4, 1")
        g.i("v_lshl_add_u32 v1, v5, 5, v1")
        g.i("v_and_b32 v5, 3, v0")
        g.i("v_lshl_add_u32 v1, v5, 3, v1")
        g.i("v_add_u32 v1, 16384, v1")
        for i in range(4):
            g.i("s_add_u32 s%d, s%d, %d" % (U0, S_W, i))
            g.i("s_and_b32 s%d, s%d, 3" % (U0, U0))
            g.i("s_lshl_b32 s%d, s%d, 1" % (U1, U0))
            g.i("v_add_u32 v5, s%d, v2" % U1)
            g.i("v_xor_b32 v5, v5, v3")
            g.i("v_lshl_add_u32 %s, v5, 4, v4" % v(VXR + i))
            g.i("v_add_u32 %s, %d, %s" % (v(VXR + 4 + i), 2 * SLOT, v(VXR + i)))
            g.i("v_add_u32 %s, %d, %s" % (v(VXR + 8 + i), 4 * SLOT, v(VXR + i)))
            g.i("s_mul_i32 s%d, s%d, 3072" % (U0, U0))
            g.i("v_add_u32 %s, s%d, v1" % (v(VWR + i), U0))
            g.i("v_add_u32 %s, %d, %s" % (v(VWR + 4 + i), 2 * SLOT, v(VWR + i)))
            g.i("v_add_u32 %s, %d, %s" % (v(VWR + 8 + i), 4 * SLOT, v(VWR + i)))
        g.i("v_mov_b32 %s, 0x3f803f80" % v(ONES))
        g.i("v_mov_b32 %s, 0" % v(S1))
        g.i("v_mov_b32 %s, 0" % v(S2))
        for k in range(3):
            g.i("v_mov_b32 %s, 0" % v(CSA + k))
        g.i("v_lshlrev_b32 v1, 2, v0")
        g.i("v_mov_b32 v2, 0")
        g.i("v_add_u32 v1, %d, v1" % CS)
        g.i("ds_write_b32 v1, v2")
        g.i("ds_write_b32 v1, v2 offset:256")
        g.i("s_waitcnt lgkmcnt(0)")

        def reads(c, i, b):
            st = (c % 5) // 2
            so = ((c % 5) % 2) * SLOT
            g.i("ds_read_b128 %s, %s offset:%d" % (vr(XF[b], 4), v(VXR + 4 * st + i), so))
            for gi in range(3):
                for hh in range(2):
                    g.i("ds_read_b64_tr_b16 %s, %s offset:%d" % (vr(WF[b] + 4 * gi + 2 * hh, 2), v(VWR + 4 * st + i), so + gi * 1024 + hh * 256))

        first = True
        for c in range(8):
            g.vm_wait(("p1", c))
            g.i("s_barrier")
            if c == 0:
                nf = g.newlabel("L_noflag")
                g.i("s_or_b32 s%d, s2, s%d" % (U0, S_W))
                g.i("s_cmp_lg_u32 s%d, 0" % U0)
                g.i("s_cbranch_scc1 %s" % nf)
                g.i("v_mov_b32 v1, 0")
                g.i("v_mov_b32 v2, 1")
                g.i("global_store_dword v1, v2, %s sc0 sc1" % sr(S_DBG, 2)); g.vm.pop()
                g.label(nf)
            if c == 6:
                g.i("v_mov_b32 v1, 0")
                g.i("global_load_dword %s, v1, %s sc1" % (v(FLAG), sr(S_DBG, 2)), tag="flag")
            parts = chunk_parts(c + LOOK) if c + LOOK < 8 else [[], [], [], []]
            reads(c, 0, 0)
            for i in range(4):
                b = i & 1
                if i < 3:
                    reads(c, i + 1, 1 - b)
                    g.i("s_waitcnt lgkmcnt(7)")
                else:
                    g.i("s_waitcnt lgkmcnt(0)")
                cq = "0" if first else vr(AQ, 16)
                ck = "0" if first else vr(AK, 16)
                cv = "0" if first else vr(AV, 16)
                first = False
                g.mfma(AQ, vr(WF[b], 4), vr(XF[b], 4), cq)
                for k in range(4):
                    g.i("v_dot2c_f32_bf16 %s, %s, %s" % (v(S1), v(XF[b] + k), v(ONES)))
                g.mfma(AK, vr(WF[b] + 4, 4), vr(XF[b], 4), ck)
                for k in range(4):
                    g.i("v_dot2c_f32_bf16 %s, %s, %s" % (v(S2), v(XF[b] + k), v(XF[b] + k)))
                g.mfma(AV, vr(XF[b], 4), vr(WF[b] + 8, 4), cv)
                emit(parts[i])
                if i == 0:
                    for gi in range(3):
                        for k in range(4):
                            g.i("v_dot2c_f32_bf16 %s, %s, %s" % (v(CSA + gi), v(WF[b] + 4 * gi + k), v(ONES)))
        g.stamp(1)
        g.cross_half(S1, T)
        g.cross_half(S2, T)
        MEAN, RSTD, RQ = T + 2, T + 4, T + 6
        g.i("v_mul_f32 %s, %s, %s" % (v(MEAN), hexf(1.0 / 512), v(S1)))
        g.i("v_mul_f32 %s, %s, %s" % (v(T), hexf(1.0 / 512), v(S2)))
        g.i("v_fma_f32 %s, -%s, %s, %s" % (v(T), v(MEAN), v(MEAN), v(T)))
        g.i("v_max_f32 %s, 0, %s" % (v(T), v(T)))
        g.i("v_add_f32 %s, %s, %s" % (v(T), hexf(1e-5), v(T)))
        g.i("v_rsq_f32 %s, %s" % (v(RSTD), v(T)))
        g.i("v_and_b32 v1, 31, v0")
        g.i("v_lshlrev_b32 v1, 2, v1")
        g.i("s_lshl_b32 s%d, s%d, 8" % (U0, S_W))
        g.i("s_add_u32 s%d, s%d, %d" % (U0, U0, ST))
        g.i("v_add_u32 v3, %d, v1" % CS)
        for gi in range(3):
            g.i("ds_add_f32 v3, %s offset:%d" % (v(CSA + gi), gi * 128))
        g.i("v_add_u32 v2, s%d, v1" % U0)
        g.i("ds_write_b32 v2, %s" % v(RSTD))
        g.i("ds_write_b32 v2, %s offset:128" % v(MEAN))
        QS = 0.25 * 1.4426950408889634
        g.i("v_mul_f32 %s, %s, %s" % (v(RQ), hexf(QS), v(RSTD)))
        CQ, CK, RV, MV, CV = 144, 160, 176, 192, 208
        g.i("v_lshrrev_b32 v4, 5, v0")
        g.i("v_lshlrev_b32 v4, 4, v4")
        g.i("v_add_u32 v5, %d, v4" % CS)
        g.i("v_add_u32 v7, s%d, v4" % U0)
        S_TILE, S_HA = 98, 99
        g.i("s_lshl_b32 s%d, s%d, 2" % (S_TILE, S_RB))
        g.i("s_add_u32 s%d, s%d, s%d" % (S_TILE, S_TILE, S_W))
        g.i("s_lshl_b32 s%d, s%d, 1" % (S_HA, S_CB))
        g.i("s_lshl_b32 s%d, s%d, 16" % (T0, S_HA))
        g.i("s_lshl_b32 s%d, s%d, 10" % (T1, S_TILE))
        g.i("s_add_u32 s%d, s%d, s%d" % (T0, T0, T1))
        g.i("s_add_u32 s%d, s%d, 0x%x" % (T0, T0, WS_QF))
        g.i("s_add_u32 s%d, s%d, 0x10000" % (T1, T0))
        g.i("s_lshl_b32 s%d, s%d, 17" % (T2, S_HA))
        g.i("s_lshl_b32 s%d, s%d, 11" % (T3, S_TILE))
        g.i("s_add_u32 s%d, s%d, s%d" % (T2, T2, T3))
        g.i("s_add_u32 s%d, s%d, 0x%x" % (T2, T2, WS_KV))
        g.i("s_add_u32 s%d, s%d, 0x20000" % (T3, T2))
        g.i("s_add_u32 s%d, s%d, 1024" % (T4, T2))
        g.i("s_lshl_b32 s%d, s%d, 8" % (T5, S_HA))
        g.i("s_lshl_b32 s%d, s%d, 2" % (T6, S_TILE))
        g.i("s_add_u32 s%d, s%d, s%d" % (T5, T5, T6))
        g.i("s_add_u32 s%d, s%d, 0x%x" % (T5, T5, WS_KMAX))
        g.cnt_off(T7, S_CB, C_B1)
        g.i("s_waitcnt lgkmcnt(0)")
        g.i("s_barrier")
        for i4 in range(4):
            g.i("ds_read_b128 %s, v5 offset:%d" % (vr(CK + 4 * i4, 4), 128 + i4 * 32))
        for i4 in range(4):
            g.i("ds_read_b128 %s, v5 offset:%d" % (vr(CQ + 4 * i4, 4), i4 * 32))
        g.i("ds_read_b32 %s, v3 offset:256" % v(CV))
        for i4 in range(4):
            g.i("ds_read_b128 %s, v7 offset:%d" % (vr(MV + 4 * i4, 4), 128 + i4 * 32))
        for i4 in range(4):
            g.i("ds_read_b128 %s, v7 offset:%d" % (vr(RV + 4 * i4, 4), i4 * 32))
        PQ, PK, PV = 216, 224, 232
        KA, KB = T + 8, T + 10
        g.i("v_lshlrev_b32 v2, 4, v4")
        g.i("v_and_b32 v3, 15, v0")
        g.i("v_lshl_add_u32 v2, v3, 4, v2")
        g.i("v_bfe_u32 v4, v0, 4, 1")
        g.i("v_lshlrev_b32 v4, 17, v4")
        g.i("v_add_u32 v2, v2, v4")
        g.i("s_waitcnt lgkmcnt(13)")
        for r in range(8):
            g.pk("fma", AK + 2 * r, MEAN, CK + 2 * r, AK + 2 * r, bx=True, negx=True)
        for r in range(8):
            g.pk("mul", AK + 2 * r, RSTD, AK + 2 * r, bx=True)
        for r in range(8):
            g.i("v_cvt_pk_bf16_f32 %s, %s, %s" % (v(PK + r), v(AK + 2 * r), v(AK + 2 * r + 1)))
        g.i("buffer_store_dwordx4 %s, %s, %s, s%d offen sc1" % (vr(PK, 4), v(VL16), sr(SRD_WS, 4), T2))
        g.i("buffer_store_dwordx4 %s, %s, %s, s%d offen sc1" % (vr(PK + 4, 4), v(VL16), sr(SRD_WS, 4), T3))
        g.i("s_waitcnt lgkmcnt(9)")
        for r in range(8):
            g.pk("fma", AQ + 2 * r, MEAN, CQ + 2 * r, AQ + 2 * r, bx=True, negx=True)
        for r in range(8):
            g.pk("mul", AQ + 2 * r, RQ, AQ + 2 * r, bx=True)
        for r in range(8):
            g.i("v_cvt_pk_bf16_f32 %s, %s, %s" % (v(PQ + r), v(AQ + 2 * r), v(AQ + 2 * r + 1)))
        g.i("buffer_store_dwordx4 %s, %s, %s, s%d offen sc1" % (vr(PQ, 4), v(VL16), sr(SRD_WS, 4), T0))
        g.i("buffer_store_dwordx4 %s, %s, %s, s%d offen sc1" % (vr(PQ + 4, 4), v(VL16), sr(SRD_WS, 4), T1))
        g.i("s_waitcnt lgkmcnt(0)")
        for r in range(8):
            g.pk("fma", AV + 2 * r, CV, MV + 2 * r, AV + 2 * r, bx=True, negx=True)
        for r in range(8):
            g.pk("mul", AV + 2 * r, RV + 2 * r, AV + 2 * r)
        for r in range(8):
            g.i("v_cvt_pk_bf16_f32 %s, %s, %s" % (v(PV + r), v(AV + 2 * r), v(AV + 2 * r + 1)))
        g.i("buffer_store_dwordx4 %s, v2, %s, s%d offen sc1" % (vr(PV, 4), sr(SRD_WS, 4), T4))
        g.i("buffer_store_dwordx4 %s, v2, %s, s%d offen offset:512 sc1" % (vr(PV + 4, 4), sr(SRD_WS, 4), T4))
        g.pk("mul", KA, AK, AK)
        g.pk("mul", KB, AK + 8, AK + 8)
        for r in range(1, 4):
            g.pk("fma", KA, AK + 2 * r, AK + 2 * r, KA)
            g.pk("fma", KB, AK + 8 + 2 * r, AK + 8 + 2 * r, KB)
        g.i("v_add_f32 %s, %s, %s" % (v(KA), v(KA), v(KA + 1)))
        g.i("v_add_f32 %s, %s, %s" % (v(KB), v(KB), v(KB + 1)))
        g.i("v_permlane32_swap_b32 %s, %s" % (v(KA), v(KB)))
        g.i("v_add_f32 %s, %s, %s" % (v(KA), v(KA), v(KB)))
        for sh in (8, 4, 2, 1):
            g.i("v_max_f32_dpp %s, %s, %s row_ror:%d row_mask:0xf bank_mask:0xf" % (v(KA), v(KA), v(KA), sh))
        g.i("v_mov_b32 %s, %s" % (v(T), v(KA)))
        g.i("v_permlane16_swap_b32 %s, %s" % (v(KA), v(T)))
        g.i("v_max_f32 %s, %s, %s" % (v(KA), v(KA), v(T)))
        g.i("v_lshrrev_b32 v3, 5, v0")
        g.i("v_lshlrev_b32 v3, 8, v3")
        g.i("s_mov_b32 s%d, 1" % S_EXEC)
        g.i("s_mov_b32 s%d, 1" % (S_EXEC + 1))
        g.i("s_mov_b64 exec, %s" % sr(S_EXEC, 2))
        g.i("buffer_store_dword %s, v3, %s, s%d offen sc1" % (v(KA), sr(SRD_WS, 4), T5))
        g.i("s_mov_b64 exec, -1")
        g.vm_wait("flag")
        lab = g.wave0_begin()
        g.i("v_readfirstlane_b32 s%d, %s" % (U0, v(FLAG)))
        g.i("s_cmp_eq_u32 s%d, 1" % U0)
        g.i("s_cbranch_scc1 %s" % lab)
        loop = g.newlabel("L_initpoll")
        g.i("v_mov_b32 v1, 0")
        g.i("s_mov_b32 s%d, 0" % S_SPIN)
        g.label(loop)
        g.i("global_load_dword %s, v1, %s sc1" % (v(FLAG), sr(S_DBG, 2))); g.vm.pop()
        g.i("s_add_u32 s%d, s%d, 1" % (S_SPIN, S_SPIN))
        g.i("s_waitcnt vmcnt(0)")
        g.i("v_readfirstlane_b32 s%d, %s" % (U0, v(FLAG)))
        g.i("s_cmp_eq_u32 s%d, 1" % U0)
        g.i("s_cbranch_scc1 %s" % lab)
        g.i("s_cmp_lt_u32 s%d, 0x%x" % (S_SPIN, SPIN_MAX))
        g.i("s_cbranch_scc1 %s" % loop)
        g.label(lab)
        g.arrive(T7, 1)
        g.stamp(2)

    def tiles(self):
        g = self
        g.i("s_and_b32 s%d, s%d, 1" % (T0, S_XCD))
        g.i("s_lshl_b32 s%d, s%d, 2" % (T0, T0))
        g.i("s_and_b32 s%d, s%d, 3" % (T1, S_SLOT))
        g.i("s_add_u32 s%d, s%d, s%d" % (S_DB, T0, T1))
        g.i("s_lshr_b32 s%d, s%d, 1" % (T0, S_XCD))
        g.i("s_lshl_b32 s%d, s%d, 3" % (T0, T0))
        g.i("s_lshr_b32 s%d, s%d, 2" % (T1, S_SLOT))
        g.i("s_add_u32 s%d, s%d, s%d" % (S_SB, T0, T1))
        g.i("s_and_b32 s%d, s%d, 3" % (T0, S_XCD))
        g.i("s_lshl_b32 s%d, s%d, 1" % (T0, T0))
        g.i("s_and_b32 s%d, s%d, 1" % (T1, S_SLOT))
        g.i("s_add_u32 s%d, s%d, s%d" % (S_DB4, T0, T1))
        g.i("s_lshr_b32 s%d, s%d, 2" % (T0, S_XCD))
        g.i("s_mul_i32 s%d, s%d, 11" % (T0, T0))
        g.i("s_lshr_b32 s%d, s%d, 1" % (T1, S_SLOT))
        g.i("s_add_u32 s%d, s%d, s%d" % (S_FB, T0, T1))
        g.i("s_cmp_lt_u32 s%d, 22" % S_SLOT)
        g.i("s_cselect_b32 s%d, s%d, 0" % (SRD_W1 + 2, SRD_W1 + 2))
        g.i("s_lshl_b32 s%d, s%d, 16" % (T0, S_SB))
        g.i("s_lshr_b32 s%d, s%d, 1" % (T1, S_W))
        g.i("s_lshl_b32 s%d, s%d, 15" % (T1, T1))
        g.i("s_add_u32 s%d, s%d, s%d" % (T0, T0, T1))
        g.i("s_lshl_b32 s%d, s%d, 7" % (T1, S_DB))
        g.i("s_add_u32 s%d, s%d, s%d" % (T0, T0, T1))
        g.i("s_and_b32 s%d, s%d, 1" % (T1, S_W))
        g.i("s_lshl_b32 s%d, s%d, 6" % (T1, T1))
        g.i("s_add_u32 s%d, s%d, s%d" % (S_OUTOFF, T0, T1))

    def tr_lane(self, dst, hshift):
        g = self
        g.i("v_lshrrev_b32 v1, 5, v0")
        g.i("v_lshlrev_b32 v1, %d, v1" % hshift)
        g.i("v_bfe_u32 v2, v0, 2, 2")
        g.i("v_add_u32 v1, v1, v2")
        g.i("v_lshlrev_b32 v1, 7, v1")
        g.i("v_bfe_u32 v2, v0, 4, 1")
        g.i("v_bfe_u32 v3, v0, 1, 1")
        g.i("v_lshl_add_u32 v2, v2, 1, v3")
        g.i("v_bfe_u32 v3, v0, 3, 1")
        g.i("v_lshlrev_b32 v3, 2, v3")
        g.i("v_xor_b32 v2, v2, v3")
        g.i("v_lshl_add_u32 v1, v2, 4, v1")
        g.i("v_and_b32 v3, 1, v0")
        g.i("v_lshl_add_u32 %s, v3, 3, v1" % v(dst))

    def tr_pair(self, dst, lane, base):
        g = self
        g.i("v_add_u32 %s, %s, %s" % (v(dst), str(base), v(lane)))
        g.i("v_xor_b32 %s, 64, %s" % (v(dst + 1), v(dst)))

    def dma_rows_voff(self, dst, pitch, colbytes_sgpr):
        g = self
        g.i("v_lshrrev_b32 v1, 3, v0")
        g.i("v_mul_u32_u24 v1, %d, v1" % pitch)
        g.i("v_and_b32 v2, 7, v0")
        g.i("v_bfe_u32 v3, v0, 4, 1")
        g.i("v_lshlrev_b32 v3, 2, v3")
        g.i("v_xor_b32 v2, v2, v3")
        g.i("v_lshlrev_b32 v2, 4, v2")
        g.i("v_add3_u32 %s, v1, v2, s%d" % (v(dst), colbytes_sgpr))

    def prefetch_setup(self):
        g = self
        g.i("s_lshl_b32 s%d, s%d, 7" % (T0, S_FB))
        g.dma_rows_voff(PF, 2752, T0)
        g.i("v_add_u32 %s, %d, %s" % (v(PF + 1), 8 * 2752, v(PF)))
        g.i("s_mul_i32 s%d, s%d, %d" % (S_PW1, S_W, 512 * 2752))
        g.i("s_lshl_b32 s%d, s%d, 7" % (T0, S_SB))
        g.dma_rows_voff(PF + 2, 4096, T0)
        g.i("v_add_u32 %s, %d, %s" % (v(PF + 3), 8 * 4096 - 1024, v(PF + 2)))
        g.i("s_mul_i32 s%d, s%d, %d" % (S_PW2, S_W, 22 * 16 * 4096))
        g.i("s_lshl_b32 s%d, s%d, 7" % (T0, S_DB))
        g.dma_rows_voff(PF + 4, 1024, T0)
        g.i("v_add_u32 %s, %d, %s" % (v(PF + 5), 8 * 1024 - 1024, v(PF + 4)))
        g.i("s_lshl_b32 s%d, s%d, 17" % (S_PWO, S_W))
        g.i("v_and_b32 v1, 31, v0")
        g.i("v_lshlrev_b32 v1, 10, v1")
        g.i("v_lshrrev_b32 v2, 5, v0")
        g.i("v_lshl_add_u32 %s, v2, 3, v1" % v(PF + 6))

    def job_wo(self, k):
        return [("s_mul_i32 s%d, s%d, 16384" % (S_PM0, S_W), None),
                ("s_add_u32 m0, s%d, %d" % (S_PM0, L_WO + k * 2048), None),
                ("buffer_load_dwordx4 %s, %s, s%d offen lds" % (v(PF + 4), sr(SRD_WO, 4), S_PWO), "pf"),
                ("buffer_load_dwordx4 %s, %s, s%d offen offset:1024 lds" % (v(PF + 5), sr(SRD_WO, 4), S_PWO), "pf"),
                ("s_add_u32 s%d, s%d, 16384" % (S_PWO, S_PWO), None)][(0 if k == 0 else 1):]

    def job_w1(self, j):
        return [("buffer_load_dwordx4 %s, %s, %s, s%d offen" % (ar(8 * j, 4), v(PF), sr(SRD_W1, 4), S_PW1), "pf"),
                ("buffer_load_dwordx4 %s, %s, %s, s%d offen" % (ar(8 * j + 4, 4), v(PF + 1), sr(SRD_W1, 4), S_PW1), "pf"),
                ("s_add_u32 s%d, s%d, %d" % (S_PW1, S_PW1, 16 * 2752), None)]

    def job_w2reg(self, r0, r1):
        return [("buffer_load_dwordx4 %s, %s, %s, s%d offen" % (r0, v(PF + 2), sr(SRD_W2, 4), S_PW2), "pf"),
                ("buffer_load_dwordx4 %s, %s, %s, s%d offen offset:1024" % (r1, v(PF + 3), sr(SRD_W2, 4), S_PW2), "pf"),
                ("s_add_u32 s%d, s%d, %d" % (S_PW2, S_PW2, 16 * 4096), None)]

    def job_w2lds(self, p):
        if p < NW2B:
            pre = [("s_mul_i32 s%d, s%d, %d" % (S_PM0, S_W, NW2B * 2048), None)] if p == 0 else []
            m0 = ("s_add_u32 m0, s%d, %d" % (S_PM0, L_W2B + p * 2048), None)
        else:
            q = p - NW2B
            pre = [("s_lshl_b32 s%d, s%d, 12" % (S_PM0, S_W), None)] if q == 0 else []
            m0 = ("s_add_u32 m0, s%d, %d" % (S_PM0, L_W2B2 + q * 2048), None)
        return pre + [m0,
                      ("buffer_load_dwordx4 %s, %s, s%d offen lds" % (v(PF + 2), sr(SRD_W2, 4), S_PW2), "pf"),
                      ("buffer_load_dwordx4 %s, %s, s%d offen offset:1024 lds" % (v(PF + 3), sr(SRD_W2, 4), S_PW2), "pf"),
                      ("s_add_u32 s%d, s%d, %d" % (S_PW2, S_PW2, 16 * 4096), None)]

    def job_x(self):
        return [("buffer_load_dwordx2 %s, %s, %s, s%d offen offset:%d" % (vr(XR + 2 * i4, 2), v(PF + 6), sr(SRD_X, 4), S_OUTOFF, 16 * i4), "pf") for i4 in range(4)]

    def all_jobs(self):
        jobs = {}
        t = 0
        for k in range(8):
            jobs[t] = self.job_wo(k); t += 1
        for j in range(32):
            jobs[t] = self.job_w1(j); t += 1
        for j in range(NW2A):
            jobs[t] = self.job_w2reg(vr(W2A + 8 * j, 4), vr(W2A + 8 * j + 4, 4)); t += 1
        for p in range(NW2B):
            jobs[t] = self.job_w2lds(p); t += 1
        assert t >= 56, t
        for p in range(NW2B, NW2B + NW2B2):
            jobs[t] = self.job_w2lds(p); t += 1
        jobs[t] = self.job_x(); t += 1
        assert t <= 64
        return jobs

    def p2(self):
        g = self
        RS, TS = KV_RS, KV_TS
        S_HEAD, S_QB, S_KV, S_M0B = S_A, S_B, S_C, S_D
        g.tiles()
        g.i("s_lshl_b32 s%d, s%d, 2" % (T0, S_XCD))
        g.i("s_lshr_b32 s%d, s%d, 3" % (T1, S_SLOT))
        g.i("s_add_u32 s%d, s%d, s%d" % (S_HEAD, T0, T1))
        g.i("s_and_b32 s%d, s%d, 7" % (S_QB, S_SLOT))
        QA, QB = 8, 12
        KF = [16, 20]
        VF = [24, 32]
        SS = [40, 56]
        PK = [72, 80]
        O = [88, 104]
        VVA, VVB = 121, 122
        T = 124
        g.i("v_and_b32 v1, 31, v0")
        g.i("v_min_u32 v1, 23, v1")
        g.i("v_lshrrev_b32 v2, 3, v1")
        g.i("v_mul_u32_u24 v2, %d, v2" % RS)
        g.i("v_and_b32 v3, 7, v1")
        g.i("v_mul_u32_u24 v3, %d, v3" % TS)
        g.i("v_add_u32 v2, v2, v3")
        for k in range(4):
            g.i("v_mov_b32 %s, 0x3f803f80" % v(16 + k))
        g.i("ds_write_b128 v2, %s offset:2048" % vr(16, 4))
        g.i("v_and_b32 v1, 31, v0")
        g.i("v_lshrrev_b32 v2, 5, v0")
        g.i("v_lshlrev_b32 v2, 8, v2")
        g.i("v_lshl_add_u32 v2, v1, 4, v2")
        g.i("v_add_u32 v2, 1024, v2")
        g.i("v_add_u32 v3, 512, v2")
        g.i("v_mov_b32 v4, 2048")
        g.i("v_cmp_gt_u32 vcc, 16, v1")
        g.i("v_cndmask_b32 %s, v4, v2, vcc" % v(VVA))
        g.i("v_cndmask_b32 %s, v4, v3, vcc" % v(VVB))
        g.prefetch_setup()
        g.i("s_lshl_b32 s%d, s%d, 17" % (T0, S_HEAD))
        g.i("s_lshl_b32 s%d, s%d, 12" % (T1, S_W))
        g.i("s_add_u32 s%d, s%d, s%d" % (S_KV, T0, T1))
        g.i("s_add_u32 s%d, s%d, 0x%x" % (S_KV, S_KV, WS_KV))
        g.i("s_mul_i32 s%d, s%d, %d" % (S_M0B, S_W, 2 * TS))
        g.i("s_lshl_b32 s%d, s%d, 16" % (T2, S_HEAD))
        g.i("s_lshl_b32 s%d, s%d, 13" % (T1, S_QB))
        g.i("s_add_u32 s%d, s%d, s%d" % (T2, T2, T1))
        g.i("s_lshl_b32 s%d, s%d, 11" % (T1, S_W))
        g.i("s_add_u32 s%d, s%d, s%d" % (T2, T2, T1))
        g.i("s_add_u32 s%d, s%d, 0x%x" % (T2, T2, WS_QF))
        g.i("s_lshl_b32 s%d, s%d, 8" % (T3, S_HEAD))
        g.i("s_add_u32 s%d, s%d, 0x%x" % (T3, T3, WS_KMAX))
        g.i("v_lshlrev_b32 v7, 2, v0")
        g.cnt_off(T7, S_HEAD, C_B1, shift=1)
        g.i("s_waitcnt lgkmcnt(0)")
        g.wait_cnt(T7, 16, 1)
        g.stamp(3)

        def issue_chunk(c):
            slot = (c % KV_N) * RS
            t = ("kv", c)
            g.i("s_add_u32 m0, s%d, %d" % (S_M0B, slot))
            g.i("buffer_load_dwordx4 %s, %s, s%d offen sc1 lds" % (v(VL16), sr(SRD_WS, 4), S_KV), tag=t)
            g.i("buffer_load_dwordx4 %s, %s, s%d offen offset:1024 sc1 lds" % (v(VL16), sr(SRD_WS, 4), S_KV), tag=t)
            g.i("s_add_u32 m0, s%d, %d" % (S_M0B, slot + 16))
            g.i("buffer_load_dwordx4 %s, %s, s%d offen offset:2048 sc1 lds" % (v(VL16), sr(SRD_WS, 4), S_KV), tag=t)
            g.i("buffer_load_dwordx4 %s, %s, s%d offen offset:3072 sc1 lds" % (v(VL16), sr(SRD_WS, 4), S_KV), tag=t)
            g.i("s_add_u32 s%d, s%d, 16384" % (S_KV, S_KV))
        g.i("buffer_load_dwordx4 %s, %s, %s, s%d offen sc1" % (vr(QA, 4), v(VL16), sr(SRD_WS, 4), T2), tag="q")
        g.i("buffer_load_dwordx4 %s, %s, %s, s%d offen offset:1024 sc1" % (vr(QB, 4), v(VL16), sr(SRD_WS, 4), T2), tag="q")
        issue_chunk(0)
        g.i("buffer_load_dword %s, v7, %s, s%d offen sc1" % (v(T), sr(SRD_WS, 4), T3), tag="km")
        issue_chunk(1)
        g.vm_wait(("kv", 0))
        g.i("s_barrier")
        g.stamp(4)
        jobs = g.all_jobs() if not self.opts.get("nopf") else {}

        def off(Tn):
            return ((Tn >> 3) % KV_N) * RS + (Tn & 7) * TS
        g.i("ds_read_b128 %s, %s offset:%d" % (vr(KF[0], 4), v(VL16), off(0)))
        g.i("s_waitcnt lgkmcnt(0)")
        g.mfma(SS[0], vr(KF[0], 4), vr(QA, 4), "0")
        o_started = [False, False]

        def pv(which, vreg, half):
            c = vr(O[which], 16) if (o_started[which] or half == 1) else "0"
            g.mfma(O[which], vr(vreg + 4 * half, 4), vr(PK[which] + 4 * half, 4), c)
            if half == 1:
                o_started[which] = True

        for Tn in range(64):
            for which in range(2):
                cur, nxt = SS[which], SS[1 - which]
                pkc = PK[which]
                if which == 0 and (Tn & 7) == 7 and Tn < 63:
                    c = Tn >> 3
                    g.vm_wait(("kv", c + 1))
                    g.i("s_barrier")
                    if c + 2 < 8:
                        issue_chunk(c + 2)
                ex = ["v_exp_f32 %s, %s" % (v(cur + k), v(cur + k)) for k in range(16)]
                cv = ["v_cvt_pk_bf16_f32 %s, %s, %s" % (v(pkc + k), v(cur + 2 * k), v(cur + 2 * k + 1)) for k in range(8)]
                if which == 0:
                    g.mfma(nxt, vr(KF[Tn & 1], 4), vr(QB, 4), "0")
                    if Tn + 1 < 64:
                        g.i("ds_read_b128 %s, %s offset:%d" % (vr(KF[(Tn + 1) & 1], 4), v(VL16), off(Tn + 1)))
                    g.i("ds_read_b128 %s, %s offset:%d" % (vr(VF[Tn & 1], 4), v(VVA), off(Tn)))
                    g.i("ds_read_b128 %s, %s offset:%d" % (vr(VF[Tn & 1] + 4, 4), v(VVB), off(Tn)))
                    do_pv = Tn > 0
                    pvw, pvv = 1, VF[(Tn - 1) & 1]
                else:
                    g.i("s_waitcnt lgkmcnt(0)")
                    if Tn + 1 < 64:
                        g.mfma(nxt, vr(KF[(Tn + 1) & 1], 4), vr(QA, 4), "0")
                    do_pv = True
                    pvw, pvv = 0, VF[Tn & 1]
                for k in (0, 1, 2, 3, 4):
                    g.i(ex[k])
                g.i(cv[0]); g.i(cv[1])
                if do_pv:
                    pv(pvw, pvv, 0)
                for k in (5, 6, 7, 8, 9):
                    g.i(ex[k])
                g.i(cv[2]); g.i(cv[3])
                if do_pv:
                    pv(pvw, pvv, 1)
                if which == 1 and Tn in jobs:
                    for t_, tag in jobs[Tn]:
                        g.i(t_, tag=tag)
                g.i(ex[10]); g.i(ex[11]); g.i(cv[4]); g.i(ex[12]); g.i(ex[13]); g.i(cv[5])
                g.i(ex[14]); g.i(ex[15]); g.i(cv[6]); g.i(cv[7])
        pv(1, VF[63 & 1], 0)
        pv(1, VF[63 & 1], 1)
        g.stamp(5)
        g.i("s_lshl_b32 s%d, s%d, 3" % (T0, S_QB))
        g.i("s_lshl_b32 s%d, s%d, 1" % (T1, S_W))
        g.i("s_add_u32 s%d, s%d, s%d" % (T0, T0, T1))
        g.i("s_lshl_b32 s%d, s%d, 5" % (T0, T0))
        g.i("s_add_u32 s%d, s%d, s%d" % (T0, T0, S_HEAD))
        g.i("s_lshl_b32 s%d, s%d, 10" % (T0, T0))
        g.i("s_add_u32 s%d, s%d, 0x%x" % (T0, T0, WS_OF))
        g.i("s_add_u32 s%d, s%d, 32768" % (T1, T0))
        g.cnt_off(T7, S_QB, C_B2)
        for which in range(2):
            o = O[which]
            g.i("v_rcp_f32 %s, %s" % (v(T), v(o + 8)))
            for r in range(4):
                g.pk("mul", o + 2 * r, T, o + 2 * r, bx=True)
            for r in range(4):
                g.i("v_cvt_pk_bf16_f32 %s, %s, %s" % (v(PK[which] + r), v(o + 2 * r), v(o + 2 * r + 1)))
            g.i("buffer_store_dwordx4 %s, %s, %s, s%d offen sc1" % (vr(PK[which], 4), v(VL16), sr(SRD_WS, 4), T0 + which))
        if self.opts.get("nopf"):
            for Tn in sorted(g.all_jobs()):
                if Tn == 58:
                    g.i("s_barrier")
                for t_, tag in g.all_jobs()[Tn]:
                    g.i(t_, tag=tag)
        g.arrive(T7, 1)

    def p3(self):
        g = self
        S_ST, S_KH = S_A, S_B
        g.i("s_lshr_b32 s%d, s%d, 1" % (S_ST, S_W))
        g.i("s_and_b32 s%d, s%d, 1" % (S_KH, S_W))
        OF = 8
        ACC = [72, 88]
        WF = [104, 112]
        VTR = 120
        T = 122
        g.tr_lane(7, 2)
        g.i("s_lshl_b32 s%d, s%d, 15" % (T1, S_KH))
        g.i("s_add_u32 s%d, s%d, %d" % (T1, T1, L_WO))
        g.tr_pair(VTR, 7, "s%d" % T1)
        g.i("s_lshl_b32 s%d, s%d, 1" % (T2, S_SB))
        g.i("s_add_u32 s%d, s%d, s%d" % (T2, T2, S_ST))
        g.i("s_lshl_b32 s%d, s%d, 15" % (T2, T2))
        g.i("s_lshl_b32 s%d, s%d, 14" % (T1, S_KH))
        g.i("s_add_u32 s%d, s%d, s%d" % (T2, T2, T1))
        g.i("s_add_u32 s%d, s%d, 0x%x" % (T2, T2, WS_OF))
        g.i("s_lshl_b32 s%d, s%d, 13" % (T3, S_SB))
        g.i("s_lshl_b32 s%d, s%d, 8" % (T1, S_ST))
        g.i("s_add_u32 s%d, s%d, s%d" % (T3, T3, T1))
        g.i("s_add_u32 s%d, s%d, 0x%x" % (S_F, T3, WS_STATS))
        g.i("s_lshl_b32 s%d, s%d, 1" % (T1, S_DB))
        g.i("s_add_u32 s%d, s%d, s%d" % (T1, T1, S_KH))
        g.i("s_lshl_b32 s%d, s%d, 9" % (T1, T1))
        g.i("s_add_u32 s%d, s%d, s%d" % (S_E, T1, S_F))
        g.i("s_lshl_b32 s%d, s%d, 1" % (S_D, S_DB))
        g.i("s_add_u32 s%d, s%d, s%d" % (S_D, S_D, S_KH))
        g.i("s_lshl_b32 s%d, s%d, 17" % (S_D, S_D))
        g.i("s_lshl_b32 s%d, s%d, 12" % (T1, S_SB))
        g.i("s_add_u32 s%d, s%d, s%d" % (S_D, S_D, T1))
        g.i("s_lshl_b32 s%d, s%d, 11" % (T1, S_ST))
        g.i("s_add_u32 s%d, s%d, s%d" % (S_D, S_D, T1))
        g.i("s_add_u32 s%d, s%d, 0x%x" % (S_D, S_D, WS_HT))
        g.cnt_off(T7, S_SB, C_B2, shift=2)
        g.stamp(6)
        g.wait_cnt(T7, 32, 1)
        g.stamp(7)
        for k in range(16):
            if k and k % 4 == 0:
                g.i("s_add_u32 s%d, s%d, 4096" % (T2, T2))
            g.i("buffer_load_dwordx4 %s, %s, %s, s%d offen offset:%d sc1" % (vr(OF + 4 * k, 4), v(VL16), sr(SRD_WS, 4), T2, (k % 4) * 1024), tag=("of", k))

        def wreads(k, b):
            for dt in range(2):
                for hh in range(2):
                    g.i("ds_read_b64_tr_b16 %s, %s offset:%d" % (vr(WF[b] + 4 * dt + 2 * hh, 2), v(VTR + dt), k * 2048 + hh * 1024))
        wreads(0, 0)
        g.i("s_xor_b32 s%d, s%d, 1" % (T0, S_W))
        g.i("s_lshl_b32 s%d, s%d, 12" % (T0, T0))
        g.i("v_add_u32 v1, s%d, %s" % (T0, v(VL16)))
        g.i("s_lshl_b32 s%d, s%d, 12" % (S_C, S_W))
        g.i("v_add_u32 v2, s%d, %s" % (S_C, v(VL16)))
        for k in range(16):
            b = k & 1
            if k < 15:
                wreads(k + 1, 1 - b)
                g.i("s_waitcnt lgkmcnt(4)")
            else:
                g.i("s_waitcnt lgkmcnt(0)")
            g.vm_wait(("of", k))
            for dt in range(2):
                c = "0" if k == 0 else vr(ACC[dt], 16)
                g.mfma(ACC[dt], vr(WF[b] + 4 * dt, 4), vr(OF + 4 * k, 4), c)
        labx = g.newlabel("L_kh1")
        labe = g.newlabel("L_khe")
        RX = 8
        g.unpack_bf16(RX + 16, XR, 8)
        g.fence()
        g.i("s_cmp_eq_u32 s%d, 1" % S_KH)
        g.i("s_cbranch_scc1 %s" % labx)
        for i4 in range(4):
            g.i("ds_write_b128 v1, %s offset:%d" % (vr(ACC[1] + 4 * i4, 4), i4 * 1024))
        for r in range(8):
            g.pk("add", RX + 16 + 2 * r, RX + 16 + 2 * r, ACC[0] + 2 * r)
        g.i("s_branch %s" % labe)
        g.label(labx)
        for i4 in range(4):
            g.i("ds_write_b128 v1, %s offset:%d" % (vr(ACC[0] + 4 * i4, 4), i4 * 1024))
        for r in range(8):
            g.pk("add", RX + 16 + 2 * r, RX + 16 + 2 * r, ACC[1] + 2 * r)
        g.label(labe)
        g.i("s_waitcnt lgkmcnt(0)")
        g.i("s_barrier")
        for i4 in range(4):
            g.i("ds_read_b128 %s, v2 offset:%d" % (vr(RX + 4 * i4, 4), i4 * 1024))
        g.i("s_waitcnt lgkmcnt(0)")
        A0 = RX + 16
        for r in range(8):
            g.pk("add", A0 + 2 * r, A0 + 2 * r, RX + 2 * r)
        H = HREG
        for r in range(8):
            g.i("v_cvt_pk_bf16_f32 %s, %s, %s" % (v(H + r), v(A0 + 2 * r), v(A0 + 2 * r + 1)))
        g.unpack_bf16(A0, H, 8)
        SP1, SP2 = 44, 46
        g.pk("add", SP1, A0, A0 + 2)
        g.pk("mul", SP2, A0, A0)
        for r in range(1, 8):
            if r > 1:
                g.pk("add", SP1, SP1, A0 + 2 * r)
            g.pk("fma", SP2, A0 + 2 * r, A0 + 2 * r, SP2)
        S1, S2 = 48, 49
        g.i("v_add_f32 %s, %s, %s" % (v(S1), v(SP1), v(SP1 + 1)))
        g.i("v_add_f32 %s, %s, %s" % (v(S2), v(SP2), v(SP2 + 1)))
        g.cross_half(S1, T)
        g.cross_half(S2, T)
        g.i("v_and_b32 v7, 31, v0")
        g.i("v_lshlrev_b32 v7, 3, v7")
        g.i("s_mov_b32 s%d, -1" % S_EXEC)
        g.i("s_mov_b32 s%d, 0" % (S_EXEC + 1))
        g.i("s_mov_b64 exec, %s" % sr(S_EXEC, 2))
        g.i("buffer_store_dwordx2 %s, v7, %s, s%d offen sc1" % (vr(S1, 2), sr(SRD_WS, 4), S_E))
        g.i("s_mov_b64 exec, -1")
        g.cnt_off(T7, S_SB, C_B3)
        g.stamp(8)
        g.arrive(T7, 2)
        g.i("v_and_b32 v1, 31, v0")
        g.i("v_lshlrev_b32 v1, 6, v1")
        g.i("v_lshrrev_b32 v2, 5, v0")
        g.i("v_lshl_add_u32 v1, v2, 3, v1")
        g.i("v_add_u32 %s, s%d, v1" % (v(50), S_C))
        g.i("v_lshlrev_b32 v1, 3, v2")
        g.i("v_bfe_u32 v3, v0, 2, 2")
        g.i("v_add_u32 v1, v1, v3")
        g.i("v_lshlrev_b32 v1, 6, v1")
        g.i("v_bfe_u32 v3, v0, 4, 1")
        g.i("v_lshl_add_u32 v1, v3, 5, v1")
        g.i("v_and_b32 v3, 3, v0")
        g.i("v_lshl_add_u32 v1, v3, 3, v1")
        g.i("v_add_u32 %s, s%d, v1" % (v(51), S_C))
        g.i("v_lshl_add_u32 v7, v2, 12, v7")
        g.wait_cnt(T7, 8, 2)
        g.stamp(9)
        G0 = 56
        for k in range(8):
            g.i("buffer_load_dwordx2 %s, v7, %s, s%d offen offset:%d sc1" % (vr(G0 + 2 * k, 2), sr(SRD_WS, 4), S_F, k * 512), tag="st")
        g.vm_wait("st")
        for k in range(1, 8):
            g.pk("add", G0, G0, G0 + 2 * k)
        g.cross_half(G0, T)
        g.cross_half(G0 + 1, T)
        MEAN, VAR, R1, RR = 124, 125, 123, 126
        g.i("v_mul_f32 %s, %s, %s" % (v(MEAN), hexf(1.0 / 512), v(G0)))
        g.i("v_mul_f32 %s, %s, %s" % (v(VAR), hexf(1.0 / 512), v(G0 + 1)))
        g.i("v_fma_f32 %s, -%s, %s, %s" % (v(VAR), v(MEAN), v(MEAN), v(VAR)))
        g.i("v_max_f32 %s, 0, %s" % (v(VAR), v(VAR)))
        g.i("v_add_f32 %s, %s, %s" % (v(R1), hexf(1e-5), v(VAR)))
        g.i("v_rsq_f32 %s, %s" % (v(R1), v(R1)))
        g.i("v_mul_f32 %s, %s, %s" % (v(RR), v(R1), v(R1)))
        g.i("v_mul_f32 %s, %s, %s" % (v(RR), v(RR), v(VAR)))
        g.i("v_add_f32 %s, %s, %s" % (v(RR), hexf(1e-5), v(RR)))
        g.i("v_rsq_f32 %s, %s" % (v(RR), v(RR)))
        g.i("v_mul_f32 %s, %s, %s" % (v(RR), v(RR), v(R1)))
        for r in range(8):
            g.i("v_pk_add_f32 %s, %s, %s op_sel_hi:[1,0] neg_lo:[0,1] neg_hi:[0,1]" % (vr(A0 + 2 * r, 2), vr(A0 + 2 * r, 2), vr(MEAN, 2)))
        for r in range(8):
            g.pk("mul", A0 + 2 * r, RR, A0 + 2 * r, bx=True)
        PKD = 8
        for r in range(8):
            g.i("v_cvt_pk_bf16_f32 %s, %s, %s" % (v(PKD + r), v(A0 + 2 * r), v(A0 + 2 * r + 1)))
        for i4 in range(4):
            g.i("ds_write_b64 v50, %s offset:%d" % (vr(PKD + 2 * i4, 2), 16 * i4))
        FR = 16
        for j in range(2):
            for hh in range(2):
                g.i("ds_read_b64_tr_b16 %s, v51 offset:%d" % (vr(FR + 4 * j + 2 * hh, 2), j * 1024 + hh * 256))
        g.cnt_off(T7, S_DB, C_B4)
        g.i("s_waitcnt lgkmcnt(0)")
        for j in range(2):
            g.i("buffer_store_dwordx4 %s, %s, %s, s%d offen offset:%d sc1" % (vr(FR + 4 * j, 4), v(VL16), sr(SRD_WS, 4), S_D, j * 1024))
        g.arrive(T7, 2)

    def reduce4(self, acc):
        g = self
        done = g.newlabel("L_red")
        g.fence()
        for w in range(4):
            nxt = g.newlabel("L_rw")
            if w < 3:
                g.i("s_cmp_lg_u32 s%d, %d" % (S_W, w))
                g.i("s_cbranch_scc1 %s" % nxt)
            for d in range(4):
                if d == w:
                    continue
                sl = (w - d - 1) & 3
                base = L_SCR + d * 12288 + sl * 4096
                g.i("v_add_u32 v1, %d, %s" % (base, v(VL16)))
                for i4 in range(4):
                    g.i("ds_write_b128 v1, %s offset:%d" % (vr(acc + 16 * d + 4 * i4, 4), i4 * 1024))
            if w != 0:
                for r in range(8):
                    g.i("v_pk_add_f32 %s, %s, 0 op_sel_hi:[1,0]" % (vr(acc + 2 * r, 2), vr(acc + 16 * w + 2 * r, 2)))
            if w < 3:
                g.i("s_branch %s" % done)
                g.label(nxt)
        g.label(done)
        g.i("s_mul_i32 s%d, s%d, 12288" % (T0, S_W))
        g.i("s_add_u32 s%d, s%d, %d" % (T0, T0, L_SCR))
        g.i("v_add_u32 v1, s%d, %s" % (T0, v(VL16)))
        g.i("s_waitcnt lgkmcnt(0)")
        g.i("s_barrier")
        R = 72
        for sl in range(3):
            for i4 in range(4):
                g.i("ds_read_b128 %s, v1 offset:%d" % (vr(R + 16 * sl + 4 * i4, 4), sl * 4096 + i4 * 1024))
        g.i("s_waitcnt lgkmcnt(4)")
        for r in range(8):
            g.pk("add", R + 2 * r, R + 2 * r, R + 16 + 2 * r)
        for r in range(8):
            g.pk("add", acc + 2 * r, acc + 2 * r, R + 2 * r)
        g.i("s_waitcnt lgkmcnt(0)")
        for r in range(8):
            g.pk("add", acc + 2 * r, acc + 2 * r, R + 32 + 2 * r)

    def p4(self):
        g = self
        skip = "L_p4_skip"
        g.i("s_cmp_ge_u32 s%d, 22" % S_SLOT)
        g.i("s_cbranch_scc1 %s" % skip)
        ACC = 8
        WF = [72, 80]
        ARING, NA = 88, 5
        B1 = PF
        VTR, VST = 144, 146
        g.i("s_lshr_b32 s%d, s%d, 1" % (T0, S_W))
        g.i("s_lshl_b32 s%d, s%d, 6" % (T0, T0))
        g.i("s_lshl_b32 s%d, s%d, 7" % (T1, S_FB))
        g.i("s_add_u32 s%d, s%d, s%d" % (T0, T0, T1))
        g.i("v_lshrrev_b32 v1, 5, v0")
        g.i("v_lshlrev_b32 v1, 3, v1")
        B1 = 120
        for i4 in range(4):
            g.i("buffer_load_dwordx2 %s, v1, %s, s%d offen offset:%d" % (vr(B1 + 2 * i4, 2), sr(SRD_B1, 4), T0, 16 * i4), tag="b1")
        NA = 4
        S_A0, S_A1 = S_D, S_E
        g.i("s_lshl_b32 s%d, s%d, 18" % (T0, S_DB4))
        g.i("s_lshl_b32 s%d, s%d, 15" % (T1, S_W))
        g.i("s_add_u32 s%d, s%d, s%d" % (T0, T0, T1))
        g.i("s_add_u32 s%d, s%d, 0x%x" % (S_A0, T0, WS_HT))
        g.i("s_add_u32 s%d, s%d, 0x20000" % (S_A1, S_A0))
        g.tr_lane(7, 3)
        g.i("s_lshl_b32 s%d, s%d, 13" % (S_F, S_W))
        g.tr_pair(VTR, 7, "s%d" % S_F)
        g.i("v_add_u32 %s, s%d, %s" % (v(VST), S_F, v(VL16)))

        def actreg(j, t):
            return vr(ARING + 8 * j + 4 * t, 4) if j < NA else ar(8 * (j - NA) + 4 * t, 4)

        def act(j):
            q = j % 4
            for t in range(2):
                g.i("buffer_load_dwordx4 %s, %s, %s, s%d offen offset:%d sc1" % (actreg(j, t), v(VL16), sr(SRD_WS, 4), (S_A0, S_A1)[t], q * 1024), tag=("p4", j))
            if q == 3:
                g.i("s_add_u32 s%d, s%d, 4096" % (S_A0, S_A0))
                g.i("s_add_u32 s%d, s%d, 4096" % (S_A1, S_A1))

        def wr(j):
            for hh in range(2):
                g.i("ds_write_b128 %s, %s offset:%d" % (v(VST), ar(8 * j + 4 * hh, 4), (j % 4) * 2048 + hh * 1024))

        def rd(j):
            for t in range(2):
                for hh in range(2):
                    g.i("ds_read_b64_tr_b16 %s, %s offset:%d" % (vr(WF[j & 1] + 4 * t + 2 * hh, 2), v(VTR + t), (j % 4) * 2048 + hh * 512))
        wr(0); wr(1); rd(0)
        g.cnt_off(T7, S_DB4, C_B4)
        g.vm_wait("b1")
        g.stamp(10)
        g.wait_cnt(T7, 32, 1)
        g.stamp(11)
        for j in range(NA):
            act(j)
        for j in range(32):
            if j + 2 < 32:
                wr(j + 2)
            if j + 1 < 32:
                rd(j + 1)
            n = (2 if j + 2 < 32 else 0) + (4 if j + 1 < 32 else 0)
            g.i("s_waitcnt lgkmcnt(%d)" % n)
            g.vm_wait(("p4", j))
            for ft in range(2):
                for dt in range(2):
                    acc = ACC + 16 * (2 * ft + dt)
                    g.mfma(acc, vr(WF[j & 1] + 4 * ft, 4), actreg(j, dt), "0" if j == 0 else vr(acc, 16))
            if j + NA < 32:
                act(j + NA)
        g.stamp(12)
        g.reduce4(ACC)
        U, E = ACC, 72
        g.unpack_bf16(E, B1, 8)
        for r in range(8):
            g.pk("add", U + 2 * r, U + 2 * r, E + 2 * r)
        c1 = -2.0 * 0.7978845608028654 * 1.4426950408889634
        c2 = c1 * 0.044715
        g.i("v_mov_b32 v2, %s" % hexf(c1))
        g.i("v_mov_b32 v4, %s" % hexf(c2))
        for r in range(8):
            g.pk("mul", E + 2 * r, U + 2 * r, U + 2 * r)
        for r in range(8):
            g.i("v_pk_fma_f32 %s, %s, v[4:5], v[2:3] op_sel_hi:[1,0,0]" % (vr(E + 2 * r, 2), vr(E + 2 * r, 2)))
        for r in range(8):
            g.pk("mul", E + 2 * r, E + 2 * r, U + 2 * r)
        for r in range(16):
            g.i("v_exp_f32 %s, %s" % (v(E + r), v(E + r)))
        for r in range(8):
            g.i("v_pk_add_f32 %s, %s, 1.0 op_sel_hi:[1,0]" % (vr(E + 2 * r, 2), vr(E + 2 * r, 2)))
        for r in range(16):
            g.i("v_rcp_f32 %s, %s" % (v(E + r), v(E + r)))
        for r in range(8):
            g.pk("mul", U + 2 * r, U + 2 * r, E + 2 * r)
        P = 96
        for r in range(8):
            g.i("v_cvt_pk_bf16_f32 %s, %s, %s" % (v(P + r), v(U + 2 * r), v(U + 2 * r + 1)))
        nz = g.newlabel("L_nz")
        g.i("s_lshl_b32 s%d, s%d, 1" % (T0, S_FB))
        g.i("s_lshr_b32 s%d, s%d, 1" % (T1, S_W))
        g.i("s_add_u32 s%d, s%d, s%d" % (T0, T0, T1))
        g.i("s_cmp_lg_u32 s%d, 43" % T0)
        g.i("s_cbranch_scc1 %s" % nz)
        for r in range(8):
            g.i("v_mov_b32 %s, 0" % v(P + r))
        g.label(nz)
        g.i("s_lshl_b32 s%d, s%d, 11" % (T0, T0))
        g.i("s_lshl_b32 s%d, s%d, 1" % (T1, S_DB4))
        g.i("s_and_b32 s%d, s%d, 1" % (T2, S_W))
        g.i("s_add_u32 s%d, s%d, s%d" % (T1, T1, T2))
        g.i("s_mul_i32 s%d, s%d, %d" % (T1, T1, 88 * 1024))
        g.i("s_add_u32 s%d, s%d, s%d" % (T0, T0, T1))
        g.i("s_add_u32 s%d, s%d, 0x%x" % (T0, T0, WS_UF))
        g.cnt_off(T7, S_DB4, C_B5)
        for j in range(2):
            g.i("buffer_store_dwordx4 %s, %s, %s, s%d offen offset:%d sc1" % (vr(P + 4 * j, 4), v(VL16), sr(SRD_WS, 4), T0, j * 1024))
        g.arrive(T7, 1)
        g.label(skip)
        g.fence()

    def p5(self):
        g = self
        ACC = 8
        WF = [72, 80]
        VTR, VTB, VTB2, VST, B2 = 88, 90, 92, 94, 120
        CREG = 240
        for j in range(NW2C):
            for t_, tag in g.job_w2reg(ar(CREG + 8 * j, 4), ar(CREG + 8 * j + 4, 4)):
                g.i(t_, tag="w2c" if tag else None)
        g.i("s_lshr_b32 s%d, s%d, 1" % (T0, S_W))
        g.i("s_lshl_b32 s%d, s%d, 6" % (T0, T0))
        g.i("s_lshl_b32 s%d, s%d, 7" % (T1, S_SB))
        g.i("s_add_u32 s%d, s%d, s%d" % (T0, T0, T1))
        g.i("v_and_b32 v1, 31, v0")
        g.i("v_lshlrev_b32 v1, 1, v1")
        g.i("buffer_load_ushort %s, v1, %s, s%d offen" % (v(B2), sr(SRD_B2, 4), T0), tag="w2c")
        S_A0, S_A1 = S_D, S_E
        g.i("s_mul_i32 s%d, s%d, %d" % (T0, S_DB, 2 * 88 * 1024))
        g.i("s_mul_i32 s%d, s%d, %d" % (T1, S_W, 22 * 1024))
        g.i("s_add_u32 s%d, s%d, s%d" % (T0, T0, T1))
        g.i("s_add_u32 s%d, s%d, 0x%x" % (S_A0, T0, WS_UF))
        g.i("s_add_u32 s%d, s%d, %d" % (S_A1, S_A0, 88 * 1024))
        g.tr_lane(7, 2)
        g.i("s_lshl_b32 s%d, s%d, 13" % (S_F, S_W))
        g.tr_pair(VTR, 7, "s%d" % S_F)
        g.i("v_add_u32 %s, s%d, %s" % (v(VST), S_F, v(VL16)))
        g.i("s_mul_i32 s%d, s%d, %d" % (T0, S_W, NW2B * 2048))
        g.i("s_add_u32 s%d, s%d, %d" % (T0, T0, L_W2B))
        g.tr_pair(VTB, 7, "s%d" % T0)
        g.i("s_lshl_b32 s%d, s%d, 12" % (T0, S_W))
        g.i("s_add_u32 s%d, s%d, %d" % (T0, T0, L_W2B2))
        g.tr_pair(VTB2, 7, "s%d" % T0)
        NK = 22

        def staged(j):
            return j < NW2A or j >= NW2A + NW2B + NW2B2

        def wr(j):
            if not staged(j):
                return 0
            for hh in range(2):
                src = vr(W2A + 8 * j + 4 * hh, 4) if j < NW2A else ar(CREG + 8 * (j - (NK - NW2C)) + 4 * hh, 4)
                g.i("ds_write_b128 %s, %s offset:%d" % (v(VST), src, (j % 4) * 2048 + hh * 1024))
            return 2

        def rd(j):
            if staged(j):
                reg, o = VTR, (j % 4) * 2048
            elif j < NW2A + NW2B:
                reg, o = VTB, (j - NW2A) * 2048
            else:
                reg, o = VTB2, (j - NW2A - NW2B) * 2048
            for t in range(2):
                for hh in range(2):
                    g.i("ds_read_b64_tr_b16 %s, %s offset:%d" % (vr(WF[j & 1] + 4 * t + 2 * hh, 2), v(reg + t), o + hh * 1024))
            return 4
        wr(0); wr(1); rd(0)
        g.cnt_off(T7, S_DB, C_B5)
        g.vm_wait("w2c")
        g.stamp(13)
        g.wait_cnt(T7, 22, 1)
        g.stamp(14)
        for j in range(NK):
            q = j % 4
            for t in range(2):
                g.i("buffer_load_dwordx4 %s, %s, %s, s%d offen offset:%d sc1" % (ar(8 * j + 4 * t, 4), v(VL16), sr(SRD_WS, 4), (S_A0, S_A1)[t], q * 1024), tag=("p5", j))
            if q == 3:
                g.i("s_add_u32 s%d, s%d, 4096" % (S_A0, S_A0))
                g.i("s_add_u32 s%d, s%d, 4096" % (S_A1, S_A1))
            if j == 5:
                break
        nissued = 6
        for j in range(NK):
            n = 0
            if j + 2 < NK:
                n += wr(j + 2)
            if j + 1 < NK:
                n += rd(j + 1)
            g.i("s_waitcnt lgkmcnt(%d)" % n)
            g.vm_wait(("p5", j))
            for st in range(2):
                for dt in range(2):
                    acc = ACC + 16 * (2 * st + dt)
                    g.mfma(acc, ar(8 * j + 4 * dt, 4), vr(WF[j & 1] + 4 * st, 4), "0" if j == 0 else vr(acc, 16))
            if nissued < NK:
                jj = nissued
                q = jj % 4
                for t in range(2):
                    g.i("buffer_load_dwordx4 %s, %s, %s, s%d offen offset:%d sc1" % (ar(8 * jj + 4 * t, 4), v(VL16), sr(SRD_WS, 4), (S_A0, S_A1)[t], q * 1024), tag=("p5", jj))
                if q == 3:
                    g.i("s_add_u32 s%d, s%d, 4096" % (S_A0, S_A0))
                    g.i("s_add_u32 s%d, s%d, 4096" % (S_A1, S_A1))
                nissued += 1
        g.stamp(15)
        g.reduce4(ACC)
        H = HREG
        U, E = ACC, 72
        g.i("v_lshlrev_b32 v2, 16, %s" % v(B2))
        g.unpack_bf16(E, H, 8)
        for r in range(8):
            g.i("v_pk_add_f32 %s, %s, v[2:3] op_sel_hi:[1,0]" % (vr(U + 2 * r, 2), vr(U + 2 * r, 2)))
        for r in range(8):
            g.pk("add", U + 2 * r, U + 2 * r, E + 2 * r)
        P = 96
        for r in range(8):
            g.i("v_cvt_pk_bf16_f32 %s, %s, %s" % (v(P + r), v(U + 2 * r), v(U + 2 * r + 1)))
        g.i("v_and_b32 v1, 31, v0")
        g.i("v_lshlrev_b32 v1, 10, v1")
        g.i("v_lshrrev_b32 v2, 5, v0")
        g.i("v_lshl_add_u32 v1, v2, 4, v1")
        for q in range(2):
            g.i("v_permlane32_swap_b32 %s, %s" % (v(P + 4 * q), v(P + 4 * q + 2)))
            g.i("v_permlane32_swap_b32 %s, %s" % (v(P + 4 * q + 1), v(P + 4 * q + 3)))
        for q in range(2):
            g.i("buffer_store_dwordx4 %s, v1, %s, s%d offen offset:%d" % (vr(P + 4 * q, 4), sr(SRD_OUT, 4), S_OUTOFF, 32 * q))

    def build(self):
        g = self
        phases = [g.p1, g.p2, g.p3, g.p4, g.p5]
        for k, ph in enumerate(phases):
            ph()
            if self.stop_after == k + 1:
                break
        g.vm_wait_all()
        g.stamp(16)
        g.vm_wait_all()
        if self.opts.get("dbgt"):
            lab = g.newlabel("L_dbgt")
            g.i("s_and_b32 s48, s2, 63")
            g.i("s_or_b32 s48, s48, s%d" % S_W)
            g.i("s_cmp_lg_u32 s48, 0")
            g.i("s_cbranch_scc1 %s" % lab)
            g.i("s_memtime s[76:77]")
            g.i("s_memrealtime s[78:79]")
            g.i("s_waitcnt lgkmcnt(0)")
            g.i("s_sub_u32 s76, s76, s70")
            g.i("s_sub_u32 s78, s78, s72")
            g.i("s_lshr_b32 s48, s2, 6")
            g.i("s_lshl_b32 s48, s48, 3")
            g.i("s_add_u32 s48, s48, 8")
            g.i("v_mov_b32 v1, s48")
            g.i("v_mov_b32 v2, s76")
            g.i("v_mov_b32 v3, s78")
            g.i("s_mov_b64 exec, 1")
            g.i("global_store_dwordx2 v1, v[2:3], %s" % sr(S_DBG, 2))
            g.i("s_waitcnt vmcnt(0)")
            g.label(lab)
        g.i("s_endpgm")
        g.label("L_exit")
        g.i("s_endpgm")
        return g.text()


HEADER = """; Fused pre-LN MHA block + MLP-Mixer token MLP, one persistent launch (256 workgroups x 4 waves).
; @launch grid=(256,1,1) block=(256,1,1) lds=163840
.amdgcn_target "amdgcn-amd-amdhsa--gfx950"
.text
.globl {name}_kernel
.p2align 8
.type {name}_kernel,@function
{name}_kernel:
"""
FOOTER = """.section .rodata,"a"
.p2align 6
.amdhsa_kernel {name}_kernel
  .amdhsa_next_free_vgpr 512
  .amdhsa_next_free_sgpr 102
  .amdhsa_accum_offset 256
  .amdhsa_group_segment_fixed_size 0
  .amdhsa_kernarg_size 88
  .amdhsa_user_sgpr_count 2
  .amdhsa_user_sgpr_kernarg_segment_ptr 1
  .amdhsa_system_sgpr_workgroup_id_x 1
.end_amdhsa_kernel
"""


def generate(stop_after=99, opts=None):
    g = Gen(stop_after, opts)
    body = g.build()
    return HEADER.format(name=NAME) + body + FOOTER.format(name=NAME), g


if __name__ == "__main__":
    out = sys.argv[1] if len(sys.argv) > 1 else "cdna_kernels/%s.s" % NAME
    stop = int(sys.argv[2]) if len(sys.argv) > 2 else 99
    opts = {}
    for a_ in sys.argv[3:]:
        k_, _, v_ = a_.partition("=")
        opts[k_] = int(v_) if v_ else 1
    txt, g = generate(stop, opts)
    open(out, "w").write(txt)
    print("wrote %s: %d lines, %d bytes, %d nop states" % (out, txt.count("\n"), len(txt), g.nops))
```

```python
import sys
import struct
sys.path.insert(0, "work")
from asmlib import Asm, v, vr, a, ar, s, sr

NAME = "sequential_preLN__mha_block__mixer_token_mlp__prompt"

WS_CNT = 0x0
WS_STATS = 0x8000
WS_KMAX = 0x48000
WS_QF = 0x100000
WS_KV = 0x300000
WS_OF = 0x800000
WS_HT = 0xA00000
WS_UF = 0xC00000
WS_H = 0xD80000
WS_DBG = 0xF80000
WS_SIZE = 0x1000000
C_B1, C_B2, C_B3, C_B4, C_B5 = 0, 16, 24, 56, 64

KV_RS, KV_TS, KV_N = 16640, 2080, 3
L_WO = 49920
L_W2B = 115456
L_W2B2 = 33280
L_MISC = 156416
L_SCR = L_WO

S_W = 3
SRD_X, SRD_WQ, SRD_WO, SRD_W1, SRD_W2, SRD_B1, SRD_B2, SRD_OUT, SRD_WS = 8, 12, 16, 20, 24, 28, 32, 36, 40
S_DBG = 44
S_XCD = 46
S_SLOT = 47
T0, T1, T2, T3, T4, T5, T6, T7 = 48, 49, 50, 51, 52, 53, 54, 55
S_A, S_B, S_C, S_D, S_E, S_F = 56, 57, 58, 59, 60, 61
S_SB, S_DB, S_FB, S_DB4, S_OUTOFF = 62, 63, 64, 65, 66
S_ARR = 67
S_WAIT = 68
S_P0, S_P1, S_P2, S_P3 = 69, 70, 71, 72
S_B1OFF, S_B2OFF = 73, 77
S_EXEC = 74
S_SPIN = 76
S_PWO, S_PW1, S_PW2, S_PM0 = 84, 85, 86, 87
S_SB3, S_DB3, S_XOFF = 88, 89, 78
SPIN_MAX = 0x40000

VL16 = 6
HREG = 128
PF = 136
XR = 144
W2A = 152
NW2A, NW2B, NW2B2, NW2C = 13, 5, 2, 2


def f2u(x):
    return struct.unpack("<I", struct.pack("<f", x))[0]


def hexf(x):
    return "0x%08x" % f2u(x)


class Gen(Asm):
    def __init__(self, stop_after=99, opts=None):
        super().__init__()
        self.stop_after = stop_after
        self.opts = opts or {}

    def wave0_begin(self):
        lab = self.newlabel("L_w0")
        self.i("s_cmp_lg_u32 s%d, 0" % S_W)
        self.i("s_cbranch_scc1 %s" % lab)
        return lab

    def arrive(self, off_sgpr, vt):
        self.vm_wait_all()
        self.i("s_barrier")
        lab = self.wave0_begin()
        self.i("s_mov_b64 exec, 1")
        self.i("v_mov_b32 %s, 1" % v(vt))
        self.i("v_mov_b32 %s, s%d" % (v(vt + 1), off_sgpr))
        self.i("buffer_atomic_add %s, %s, %s, 0 offen sc1" % (v(vt), v(vt + 1), sr(SRD_WS, 4)))
        self.vm.pop()
        self.i("s_mov_b64 exec, -1")
        self.label(lab)

    def wait_cnt(self, off_sgpr, target, vt):
        lab = self.wave0_begin()
        loop = self.newlabel("L_poll")
        self.i("v_mov_b32 %s, s%d" % (v(vt + 1), off_sgpr))
        self.i("s_mov_b32 s%d, 0" % S_SPIN)
        self.label(loop)
        self.i("buffer_load_dword %s, %s, %s, 0 offen sc1" % (v(vt), v(vt + 1), sr(SRD_WS, 4)))
        self.vm.pop()
        self.i("s_add_u32 s%d, s%d, 1" % (S_SPIN, S_SPIN))
        self.i("s_waitcnt vmcnt(0)")
        self.i("v_readfirstlane_b32 s%d, %s" % (T0, v(vt)))
        self.i("s_cmp_ge_u32 s%d, %d" % (T0, target))
        self.i("s_cbranch_scc1 %s" % lab)
        self.i("s_cmp_lt_u32 s%d, 0x%x" % (S_SPIN, SPIN_MAX))
        self.i("s_cbranch_scc1 %s" % loop)
        self.label(lab)
        self.i("s_barrier")

    def cross_half(self, reg, tmp, op="v_add_f32"):
        self.i("v_mov_b32 %s, %s" % (v(tmp), v(reg)))
        self.i("v_permlane32_swap_b32 %s, %s" % (v(reg), v(tmp)))
        self.i("%s %s, %s, %s" % (op, v(reg), v(reg), v(tmp)))

    def stamp(self, idx):
        if not self.opts.get("stamps"):
            return
        g = self
        lab = g.wave0_begin()
        g.i("s_memtime s[80:81]")
        g.i("s_lshl_b32 s82, s2, 7")
        g.i("s_add_u32 s82, s82, %d" % (WS_DBG + idx * 4))
        g.i("s_waitcnt lgkmcnt(0)")
        g.i("v_mov_b32 v4, s80")
        g.i("v_mov_b32 v5, 0")
        g.i("buffer_store_dword v4, v5, %s, s82 offen" % sr(SRD_WS, 4))
        g.vm.pop()
        g.label(lab)

    def rstamp(self, idx):
        if not self.opts.get("stamps"):
            return
        g = self
        lab = g.wave0_begin()
        g.i("s_memrealtime s[80:81]")
        g.i("s_lshl_b32 s82, s2, 7")
        g.i("s_add_u32 s82, s82, %d" % (WS_DBG + idx * 4))
        g.i("s_waitcnt lgkmcnt(0)")
        g.i("v_mov_b32 v4, s80")
        g.i("v_mov_b32 v5, 0")
        g.i("buffer_store_dword v4, v5, %s, s82 offen" % sr(SRD_WS, 4))
        g.vm.pop()
        g.label(lab)

    def cnt_off(self, dst, idx_sgpr, cbase, shift=0):
        g = self
        if shift:
            g.i("s_lshr_b32 s%d, s%d, %d" % (dst, idx_sgpr, shift))
            g.i("s_lshl_b32 s%d, s%d, 8" % (dst, dst))
        else:
            g.i("s_lshl_b32 s%d, s%d, 8" % (dst, idx_sgpr))
        g.i("s_add_u32 s%d, s%d, %d" % (dst, dst, WS_CNT + cbase * 256))

    def srd(self, dst, src, nbytes):
        g = self
        g.i("s_mov_b32 s%d, s%d" % (dst, src))
        g.i("s_and_b32 s%d, s%d, 0xffff" % (dst + 1, src + 1))
        g.i("s_mov_b32 s%d, 0x%x" % (dst + 2, nbytes))
        g.i("s_mov_b32 s%d, 0x20000" % (dst + 3))

    def pk(self, op, d, x, y, z=None, bx=False, by=False, negx=False):
        n = 3 if z is not None else 2
        t = "v_pk_%s_f32 %s, %s, %s" % (op, vr(d, 2), vr(x, 2), vr(y, 2))
        if z is not None:
            t += ", %s" % vr(z, 2)
        if bx or by:
            sel = [0 if bx else 1, 0 if by else 1] + ([1] if n == 3 else [])
            t += " op_sel_hi:[%s]" % ",".join(map(str, sel))
        if negx:
            ng = [1, 0] + ([0] if n == 3 else [])
            t += " neg_lo:[%s] neg_hi:[%s]" % (",".join(map(str, ng)), ",".join(map(str, ng)))
        self.i(t)

    def unpack_bf16(self, dst, src, n):
        for r in range(n):
            self.i("v_lshlrev_b32 %s, 16, %s" % (v(dst + 2 * r), v(src + r)))
            self.i("v_and_b32 %s, 0xffff0000, %s" % (v(dst + 2 * r + 1), v(src + r)))

    def mfma(self, d, am, bm, c):
        self.i("v_mfma_f32_32x32x16_bf16 %s, %s, %s, %s" % (vr(d, 16), am, bm, c))

    def p1(self):
        g = self
        g.i("s_cmp_ge_u32 s2, 256")
        g.i("s_cbranch_scc1 L_exit")
        if self.opts.get("dbgt"):
            g.i("s_memtime s[100:101]")
        g.i("s_load_dwordx16 s[48:63], s[0:1], 0")
        g.i("s_load_dwordx4 s[64:67], s[0:1], 64")
        g.i("s_load_dwordx2 s[68:69], s[0:1], 80")
        g.i("v_lshrrev_b32 v1, 6, v0")
        g.i("v_and_b32 v0, 63, v0")
        g.i("v_readfirstlane_b32 s%d, v1" % S_W)
        g.i("s_and_b32 s%d, s2, 7" % S_XCD)
        g.i("s_lshr_b32 s%d, s2, 3" % S_SLOT)
        g.i("v_lshlrev_b32 %s, 4, v0" % v(VL16))
        SLOT = 28672
        CS = L_MISC
        ST = L_MISC + 512
        S_RB, S_CB = 90, 91
        S_XO, S_WOFF, S_MX, S_MW = 92, 93, 94, 95
        U0, U1 = 96, 97
        LOOK = self.opts.get("p1look", 3)
        g.i("s_lshr_b32 s%d, s%d, 1" % (U0, S_XCD))
        g.i("s_lshl_b32 s%d, s%d, 2" % (U0, U0))
        g.i("s_lshr_b32 s%d, s%d, 3" % (U1, S_SLOT))
        g.i("s_add_u32 s%d, s%d, s%d" % (S_RB, U0, U1))
        g.i("s_and_b32 s%d, s%d, 1" % (U0, S_XCD))
        g.i("s_lshl_b32 s%d, s%d, 3" % (U0, U0))
        g.i("s_and_b32 s%d, s%d, 7" % (U1, S_SLOT))
        g.i("s_add_u32 s%d, s%d, s%d" % (S_CB, U0, U1))
        g.i("s_lshl_b32 s%d, s%d, 17" % (U0, S_RB))
        g.i("s_lshl_b32 s%d, s%d, 15" % (U1, S_W))
        g.i("s_add_u32 s%d, s%d, s%d" % (S_XO, U0, U1))
        g.i("s_mov_b32 s%d, 0" % S_WOFF)
        g.i("s_lshl_b32 s%d, s%d, 12" % (S_MX, S_W))
        g.i("s_mul_i32 s%d, s%d, 3072" % (S_MW, S_W))
        g.i("s_add_u32 s%d, s%d, 16384" % (S_MW, S_MW))
        VXD = 8
        VWD = 12
        VXR = 16
        VWR = 28
        ONES = 40
        XF = [44, 48]
        WF = [52, 64]
        AQ, AK, AV = 80, 96, 112
        SQ0, SQ1, SM0, SM1 = 240, 244, 248, 252
        S1, S2 = 42, 43
        CSA = 144
        FLAG = 79
        T = 128
        g.i("v_lshrrev_b32 v1, 3, v0")
        g.i("v_lshlrev_b32 v1, 10, v1")
        g.i("v_and_b32 v2, 7, v0")
        g.i("v_lshrrev_b32 v3, 4, v0")
        for q in range(4):
            g.i("v_add_u32 v4, %d, v3" % (4 * (q & 1)))
            g.i("v_xor_b32 v4, v2, v4")
            g.i("v_lshlrev_b32 v4, 4, v4")
            g.i("v_add3_u32 %s, v4, v1, s%d" % (v(VXD + q), U0) if False else "v_add_u32 v4, v1, v4")
            g.i("v_add_u32 %s, %d, v4" % (v(VXD + q), q * 7168))
        g.i("v_lshrrev_b32 v1, 2, v0")
        g.i("s_lshl_b32 s%d, s%d, 4" % (U0, S_W))
        g.i("v_add_u32 v1, s%d, v1" % U0)
        g.i("v_mul_u32_u24 v1, 3072, v1")
        g.i("v_and_b32 v2, 3, v0")
        g.i("v_lshlrev_b32 v2, 4, v2")
        g.i("s_lshl_b32 s%d, s%d, 6" % (U1, S_CB))
        g.i("v_add3_u32 %s, v1, v2, s%d" % (v(VWD), U1))
        g.i("s_waitcnt lgkmcnt(0)")
        g.srd(SRD_X, 48, 2048 * 512 * 2)
        g.srd(SRD_WQ, 50, 512 * 1536 * 2)

        def chunk_parts(c):
            slot = (c % 5) * SLOT
            t = ("p1", c)
            X = lambda q: ("buffer_load_dwordx4 %s, %s, s%d offen offset:%d lds" % (v(VXD + q), sr(SRD_X, 4), S_XO, q * 1024), t)
            W = lambda gi: ("buffer_load_dwordx4 %s, %s, s%d offen offset:%d lds" % (v(VWD), sr(SRD_WQ, 4), S_WOFF, gi * 1024), t)
            return [
                [("s_add_u32 m0, s%d, %d" % (S_MX, slot), None), X(0), X(1)],
                [X(2), X(3), ("s_add_u32 s%d, s%d, 128" % (S_XO, S_XO), None)],
                [("s_add_u32 m0, s%d, %d" % (S_MW, slot), None), W(0), W(1)],
                [W(2), ("s_add_u32 s%d, s%d, %d" % (S_WOFF, S_WOFF, 64 * 3072), None)],
            ]

        def emit(grp):
            for t, tag in grp:
                if self.opts.get("p1nodma") and "lds" in t:
                    continue
                g.i(t, tag=tag)
        for part in chunk_parts(0):
            emit(part)
        g.srd(SRD_WS, 68, WS_SIZE)
        g.i("s_mov_b32 s%d, s66" % S_DBG)
        g.i("s_mov_b32 s%d, s67" % (S_DBG + 1))
        noinit = g.newlabel("L_noinit")
        g.i("s_or_b32 s%d, s2, s%d" % (U0, S_W))
        g.i("s_cmp_lg_u32 s%d, 0" % U0)
        g.i("s_cbranch_scc1 %s" % noinit)
        g.i("v_lshlrev_b32 v1, 8, v0")
        g.i("v_mov_b32 v2, 0")
        g.i("buffer_store_dword v2, v1, %s, 0 offen sc0 sc1" % sr(SRD_WS, 4)); g.vm.pop()
        g.i("v_add_u32 v1, 0x4000, v1")
        g.i("buffer_store_dword v2, v1, %s, 0 offen sc0 sc1" % sr(SRD_WS, 4)); g.vm.pop()
        g.label(noinit)
        for c in range(1, LOOK):
            for part in chunk_parts(c):
                emit(part)
        g.srd(SRD_WO, 52, 512 * 512 * 2)
        g.srd(SRD_W1, 56, 2048 * 1376 * 2)
        g.srd(SRD_B1, 58, 1376 * 2)
        g.srd(SRD_W2, 60, 1376 * 2048 * 2)
        g.srd(SRD_B2, 62, 2048 * 2)
        g.srd(SRD_OUT, 64, 2048 * 512 * 2)
        S_TILE, S_HA = 98, 99
        g.i("s_lshl_b32 s%d, s%d, 2" % (S_TILE, S_RB))
        g.i("s_add_u32 s%d, s%d, s%d" % (S_TILE, S_TILE, S_W))
        g.i("s_lshl_b32 s%d, s%d, 1" % (S_HA, S_CB))
        g.i("s_lshl_b32 s%d, s%d, 16" % (T0, S_HA))
        g.i("s_lshl_b32 s%d, s%d, 10" % (T1, S_TILE))
        g.i("s_add_u32 s%d, s%d, s%d" % (T0, T0, T1))
        g.i("s_add_u32 s%d, s%d, 0x%x" % (T0, T0, WS_QF))
        g.i("s_add_u32 s%d, s%d, 0x10000" % (T1, T0))
        g.i("s_lshl_b32 s%d, s%d, 17" % (T2, S_HA))
        g.i("s_lshl_b32 s%d, s%d, 11" % (T3, S_TILE))
        g.i("s_add_u32 s%d, s%d, s%d" % (T2, T2, T3))
        g.i("s_add_u32 s%d, s%d, 0x%x" % (T2, T2, WS_KV))
        g.i("s_add_u32 s%d, s%d, 0x20000" % (T3, T2))
        g.i("s_add_u32 s%d, s%d, 1024" % (T4, T2))
        g.i("s_lshl_b32 s%d, s%d, 8" % (T5, S_HA))
        g.i("s_lshl_b32 s%d, s%d, 2" % (T6, S_TILE))
        g.i("s_add_u32 s%d, s%d, s%d" % (T5, T5, T6))
        g.i("s_add_u32 s%d, s%d, 0x%x" % (T5, T5, WS_KMAX))
        g.cnt_off(S_ARR, S_CB, C_B1)
        g.i("s_lshl_b32 s%d, s2, 10" % U0)
        g.i("s_lshl_b32 s%d, s%d, 8" % (U1, S_W))
        g.i("s_add_u32 s%d, s%d, s%d" % (U0, U0, U1))
        g.i("s_add_u32 s%d, s%d, 0x%x" % (U0, U0, WS_STATS))
        g.i("v_mov_b32 v1, -1")
        g.i("v_lshlrev_b32 v2, 2, v0")
        g.i("buffer_store_dword v1, v2, %s, s%d offen sc1" % (sr(SRD_WS, 4), U0), tag="poison")
        g.stamp(0)
        g.rstamp(28)
        g.i("v_and_b32 v1, 31, v0")
        g.i("v_lshrrev_b32 v2, 5, v0")
        g.i("v_lshrrev_b32 v3, 1, v1")
        g.i("v_and_b32 v3, 7, v3")
        g.i("v_lshlrev_b32 v4, 7, v1")
        g.i("v_add_u32 v4, s%d, v4" % S_MX)
        g.i("v_and_b32 v1, 15, v0")
        g.i("v_lshrrev_b32 v1, 2, v1")
        g.i("v_lshl_add_u32 v1, v2, 3, v1")
        g.i("v_lshlrev_b32 v1, 6, v1")
        g.i("v_bfe_u32 v5, v0, 4, 1")
        g.i("v_lshl_add_u32 v1, v5, 5, v1")
        g.i("v_and_b32 v5, 3, v0")
        g.i("v_lshl_add_u32 v1, v5, 3, v1")
        g.i("v_add_u32 v1, 16384, v1")
        for i in range(4):
            g.i("s_add_u32 s%d, s%d, %d" % (U0, S_W, i))
            g.i("s_and_b32 s%d, s%d, 3" % (U0, U0))
            g.i("s_lshl_b32 s%d, s%d, 1" % (U1, U0))
            g.i("v_add_u32 v5, s%d, v2" % U1)
            g.i("v_xor_b32 v5, v5, v3")
            g.i("v_lshl_add_u32 %s, v5, 4, v4" % v(VXR + i))
            g.i("v_add_u32 %s, %d, %s" % (v(VXR + 4 + i), 2 * SLOT, v(VXR + i)))
            g.i("v_add_u32 %s, %d, %s" % (v(VXR + 8 + i), 4 * SLOT, v(VXR + i)))
            g.i("s_mul_i32 s%d, s%d, 3072" % (U0, U0))
            g.i("v_add_u32 %s, s%d, v1" % (v(VWR + i), U0))
            g.i("v_add_u32 %s, %d, %s" % (v(VWR + 4 + i), 2 * SLOT, v(VWR + i)))
            g.i("v_add_u32 %s, %d, %s" % (v(VWR + 8 + i), 4 * SLOT, v(VWR + i)))
        for k in range(4):
            g.i("v_mov_b32 %s, 0x3f803f80" % v(ONES + k))
        g.i("v_lshlrev_b32 v1, 2, v0")
        g.i("v_mov_b32 v2, 0")
        g.i("v_add_u32 v1, %d, v1" % CS)
        g.i("ds_write_b32 v1, v2")
        g.i("ds_write_b32 v1, v2 offset:256")
        g.i("s_waitcnt lgkmcnt(0)")

        def read_list(c, i, b):
            st = (c % 5) // 2
            so = ((c % 5) % 2) * SLOT
            out = ["ds_read_b128 %s, %s offset:%d" % (vr(XF[b], 4), v(VXR + 4 * st + i), so)]
            for gi in range(3):
                for hh in range(2):
                    out.append("ds_read_b64_tr_b16 %s, %s offset:%d" % (vr(WF[b] + 4 * gi + 2 * hh, 2), v(VWR + 4 * st + i), so + gi * 1024 + hh * 256))
            return out

        first = True
        for c in range(8):
            g.vm_wait(("p1", c))
            g.i("s_barrier")
            if c == 0:
                nf = g.newlabel("L_noflag")
                g.i("s_or_b32 s%d, s2, s%d" % (U0, S_W))
                g.i("s_cmp_lg_u32 s%d, 0" % U0)
                g.i("s_cbranch_scc1 %s" % nf)
                g.i("v_mov_b32 v1, 0")
                g.i("v_mov_b32 v2, 1")
                g.i("global_store_dword v1, v2, %s sc0 sc1" % sr(S_DBG, 2)); g.vm.pop()
                g.label(nf)
            if c == 6:
                g.i("v_mov_b32 v1, 0")
                g.i("global_load_dword %s, v1, %s sc1" % (v(FLAG), sr(S_DBG, 2)), tag="flag")
            parts = chunk_parts(c + LOOK) if c + LOOK < 8 else [[], [], [], []]
            if self.opts.get("p1nocomp"):
                for i in range(4):
                    emit(parts[i])
                continue
            for t_ in read_list(c, 0, 0):
                g.i(t_)
            for i in range(4):
                b = i & 1
                nxt = read_list(c, i + 1, 1 - b) if i < 3 else []
                g.i("s_waitcnt lgkmcnt(0)")
                z = lambda reg, n: "0" if first else vr(reg, n)
                m4 = lambda d, a_, b_: "v_mfma_f32_4x4x4_16b_bf16 %s, %s, %s, %s" % (vr(d, 4), vr(a_, 2), vr(b_, 2), z(d, 4))
                dm = list(parts[i])
                g.mfma(AQ, vr(WF[b], 4), vr(XF[b], 4), z(AQ, 16))
                for t_ in nxt[0:3]:
                    g.i(t_)
                g.i(m4(SQ0, XF[b], XF[b]))
                g.i(m4(SM0, XF[b], ONES))
                g.mfma(AK, vr(WF[b] + 4, 4), vr(XF[b], 4), z(AK, 16))
                for t_ in nxt[3:7]:
                    g.i(t_)
                g.i(m4(SQ1, XF[b] + 2, XF[b] + 2))
                g.i(m4(SM1, XF[b] + 2, ONES))
                g.mfma(AV, vr(XF[b], 4), vr(WF[b] + 8, 4), z(AV, 16))
                emit(dm)
                if i == 0:
                    for gi in range(3):
                        g.mfma(CSA + 16 * gi, vr(ONES, 4), vr(WF[b] + 4 * gi, 4), "0" if c == 0 else vr(CSA + 16 * gi, 16))
                first = False
        g.stamp(1)
        g.pk("add", SQ0, SQ0, SQ1)
        g.pk("add", SQ0 + 2, SQ0 + 2, SQ1 + 2)
        g.i("v_and_b32 v1, 3, v0")
        g.i("v_cmp_eq_u32 s[88:89], 1, v1")
        g.i("v_cmp_eq_u32 s[78:79], 2, v1")
        g.i("v_cmp_eq_u32 vcc, 3, v1")
        g.pk("add", SM0, SM0, SM1)
        g.pk("add", SM0 + 2, SM0 + 2, SM1 + 2)
        g.i("v_cndmask_b32 %s, %s, %s, s[88:89]" % (v(S2), v(SQ0), v(SQ0 + 1)))
        g.i("v_cndmask_b32 %s, %s, %s, s[88:89]" % (v(S1), v(SM0), v(SM0 + 1)))
        g.i("v_cndmask_b32 %s, %s, %s, s[78:79]" % (v(S2), v(S2), v(SQ0 + 2)))
        g.i("v_cndmask_b32 %s, %s, %s, s[78:79]" % (v(S1), v(S1), v(SM0 + 2)))
        g.i("v_cndmask_b32 %s, %s, %s, vcc" % (v(S2), v(S2), v(SQ0 + 3)))
        g.i("v_cndmask_b32 %s, %s, %s, vcc" % (v(S1), v(S1), v(SM0 + 3)))
        g.cross_half(S1, T)
        g.cross_half(S2, T)
        MEAN, RSTD, RQ = T + 2, T + 4, T + 6
        g.i("v_mul_f32 %s, %s, %s" % (v(MEAN), hexf(1.0 / 512), v(S1)))
        g.i("v_mul_f32 %s, %s, %s" % (v(T), hexf(1.0 / 512), v(S2)))
        g.i("v_fma_f32 %s, -%s, %s, %s" % (v(T), v(MEAN), v(MEAN), v(T)))
        g.i("v_max_f32 %s, 0, %s" % (v(T), v(T)))
        g.i("v_add_f32 %s, %s, %s" % (v(T), hexf(1e-5), v(T)))
        g.i("v_rsq_f32 %s, %s" % (v(RSTD), v(T)))
        g.i("v_and_b32 v1, 31, v0")
        g.i("v_lshlrev_b32 v1, 2, v1")
        g.i("s_lshl_b32 s%d, s%d, 8" % (U0, S_W))
        g.i("s_add_u32 s%d, s%d, %d" % (U0, U0, ST))
        g.i("v_add_u32 v3, %d, v1" % CS)
        g.i("s_mov_b32 s%d, -1" % S_EXEC)
        g.i("s_mov_b32 s%d, 0" % (S_EXEC + 1))
        g.i("s_mov_b64 exec, %s" % sr(S_EXEC, 2))
        for gi in range(3):
            g.i("ds_add_f32 v3, %s offset:%d" % (v(CSA + 16 * gi), gi * 128))
        g.i("s_mov_b64 exec, -1")
        g.i("v_add_u32 v2, s%d, v1" % U0)
        g.i("ds_write_b32 v2, %s" % v(RSTD))
        g.i("ds_write_b32 v2, %s offset:128" % v(MEAN))
        QS = 0.25 * 1.4426950408889634
        g.i("v_mul_f32 %s, %s, %s" % (v(RQ), hexf(QS), v(RSTD)))
        CQ, CK, RV, MV, CV = 144, 160, 176, 192, 208
        g.i("v_lshrrev_b32 v4, 5, v0")
        g.i("v_lshlrev_b32 v4, 4, v4")
        g.i("v_add_u32 v5, %d, v4" % CS)
        g.i("v_add_u32 v7, s%d, v4" % U0)
        g.i("s_waitcnt lgkmcnt(0)")
        g.i("s_barrier")
        for i4 in range(4):
            g.i("ds_read_b128 %s, v5 offset:%d" % (vr(CK + 4 * i4, 4), 128 + i4 * 32))
        g.stamp(17)
        for i4 in range(4):
            g.i("ds_read_b128 %s, v5 offset:%d" % (vr(CQ + 4 * i4, 4), i4 * 32))
        g.i("ds_read_b32 %s, v3 offset:256" % v(CV))
        for i4 in range(4):
            g.i("ds_read_b128 %s, v7 offset:%d" % (vr(MV + 4 * i4, 4), 128 + i4 * 32))
        for i4 in range(4):
            g.i("ds_read_b128 %s, v7 offset:%d" % (vr(RV + 4 * i4, 4), i4 * 32))
        PQ, PK, PV = 216, 224, 232
        KA, KB = T + 8, T + 10
        g.i("v_lshlrev_b32 v2, 4, v4")
        g.i("v_and_b32 v3, 15, v0")
        g.i("v_lshl_add_u32 v2, v3, 4, v2")
        g.i("v_bfe_u32 v4, v0, 4, 1")
        g.i("v_lshlrev_b32 v4, 17, v4")
        g.i("v_add_u32 v2, v2, v4")
        g.i("s_waitcnt lgkmcnt(13)")
        for r in range(8):
            g.pk("fma", AK + 2 * r, MEAN, CK + 2 * r, AK + 2 * r, bx=True, negx=True)
        for r in range(8):
            g.pk("mul", AK + 2 * r, RSTD, AK + 2 * r, bx=True)
        for r in range(8):
            g.i("v_cvt_pk_bf16_f32 %s, %s, %s" % (v(PK + r), v(AK + 2 * r), v(AK + 2 * r + 1)))
        g.i("buffer_store_dwordx4 %s, %s, %s, s%d offen sc1" % (vr(PK, 4), v(VL16), sr(SRD_WS, 4), T2))
        g.i("buffer_store_dwordx4 %s, %s, %s, s%d offen sc1" % (vr(PK + 4, 4), v(VL16), sr(SRD_WS, 4), T3))
        g.i("s_waitcnt lgkmcnt(9)")
        for r in range(8):
            g.pk("fma", AQ + 2 * r, MEAN, CQ + 2 * r, AQ + 2 * r, bx=True, negx=True)
        for r in range(8):
            g.pk("mul", AQ + 2 * r, RQ, AQ + 2 * r, bx=True)
        for r in range(8):
            g.i("v_cvt_pk_bf16_f32 %s, %s, %s" % (v(PQ + r), v(AQ + 2 * r), v(AQ + 2 * r + 1)))
        g.i("buffer_store_dwordx4 %s, %s, %s, s%d offen sc1" % (vr(PQ, 4), v(VL16), sr(SRD_WS, 4), T0))
        g.i("buffer_store_dwordx4 %s, %s, %s, s%d offen sc1" % (vr(PQ + 4, 4), v(VL16), sr(SRD_WS, 4), T1))
        g.i("s_waitcnt lgkmcnt(0)")
        for r in range(8):
            g.pk("fma", AV + 2 * r, CV, MV + 2 * r, AV + 2 * r, bx=True, negx=True)
        for r in range(8):
            g.pk("mul", AV + 2 * r, RV + 2 * r, AV + 2 * r)
        for r in range(8):
            g.i("v_cvt_pk_bf16_f32 %s, %s, %s" % (v(PV + r), v(AV + 2 * r), v(AV + 2 * r + 1)))
        g.i("buffer_store_dwordx4 %s, v2, %s, s%d offen sc1" % (vr(PV, 4), sr(SRD_WS, 4), T4))
        g.i("buffer_store_dwordx4 %s, v2, %s, s%d offen offset:512 sc1" % (vr(PV + 4, 4), sr(SRD_WS, 4), T4))
        g.pk("mul", KA, AK, AK)
        g.pk("mul", KB, AK + 8, AK + 8)
        for r in range(1, 4):
            g.pk("fma", KA, AK + 2 * r, AK + 2 * r, KA)
            g.pk("fma", KB, AK + 8 + 2 * r, AK + 8 + 2 * r, KB)
        g.i("v_add_f32 %s, %s, %s" % (v(KA), v(KA), v(KA + 1)))
        g.i("v_add_f32 %s, %s, %s" % (v(KB), v(KB), v(KB + 1)))
        g.i("v_permlane32_swap_b32 %s, %s" % (v(KA), v(KB)))
        g.i("v_add_f32 %s, %s, %s" % (v(KA), v(KA), v(KB)))
        for sh in (8, 4, 2, 1):
            g.i("v_max_f32_dpp %s, %s, %s row_ror:%d row_mask:0xf bank_mask:0xf" % (v(KA), v(KA), v(KA), sh))
        g.i("v_mov_b32 %s, %s" % (v(T), v(KA)))
        g.i("v_permlane16_swap_b32 %s, %s" % (v(KA), v(T)))
        g.i("v_max_f32 %s, %s, %s" % (v(KA), v(KA), v(T)))
        g.i("v_lshrrev_b32 v3, 5, v0")
        g.i("v_lshlrev_b32 v3, 8, v3")
        g.i("s_mov_b32 s%d, 1" % S_EXEC)
        g.i("s_mov_b32 s%d, 1" % (S_EXEC + 1))
        g.i("s_mov_b64 exec, %s" % sr(S_EXEC, 2))
        g.i("buffer_store_dword %s, v3, %s, s%d offen sc1" % (v(KA), sr(SRD_WS, 4), T5))
        g.i("s_mov_b64 exec, -1")
        g.stamp(18)
        g.vm_wait("flag")
        lab = g.wave0_begin()
        g.i("v_readfirstlane_b32 s%d, %s" % (U0, v(FLAG)))
        g.i("s_cmp_eq_u32 s%d, 1" % U0)
        g.i("s_cbranch_scc1 %s" % lab)
        loop = g.newlabel("L_initpoll")
        g.i("v_mov_b32 v1, 0")
        g.i("s_mov_b32 s%d, 0" % S_SPIN)
        g.label(loop)
        g.i("global_load_dword %s, v1, %s sc1" % (v(FLAG), sr(S_DBG, 2))); g.vm.pop()
        g.i("s_add_u32 s%d, s%d, 1" % (S_SPIN, S_SPIN))
        g.i("s_waitcnt vmcnt(0)")
        g.i("v_readfirstlane_b32 s%d, %s" % (U0, v(FLAG)))
        g.i("s_cmp_eq_u32 s%d, 1" % U0)
        g.i("s_cbranch_scc1 %s" % lab)
        g.i("s_cmp_lt_u32 s%d, 0x%x" % (S_SPIN, SPIN_MAX))
        g.i("s_cbranch_scc1 %s" % loop)
        g.label(lab)
        g.arrive(S_ARR, 1)
        g.stamp(2)
        if self.stop_after > 1:
            g.p2_pre()

    def tiles(self):
        g = self
        g.i("s_and_b32 s%d, s%d, 1" % (T0, S_XCD))
        g.i("s_lshl_b32 s%d, s%d, 2" % (T0, T0))
        g.i("s_and_b32 s%d, s%d, 3" % (T1, S_SLOT))
        g.i("s_add_u32 s%d, s%d, s%d" % (S_DB, T0, T1))
        g.i("s_lshr_b32 s%d, s%d, 1" % (T0, S_XCD))
        g.i("s_lshl_b32 s%d, s%d, 3" % (T0, T0))
        g.i("s_lshr_b32 s%d, s%d, 2" % (T1, S_SLOT))
        g.i("s_add_u32 s%d, s%d, s%d" % (S_SB, T0, T1))
        g.i("s_and_b32 s%d, s%d, 3" % (T0, S_XCD))
        g.i("s_lshl_b32 s%d, s%d, 1" % (T0, T0))
        g.i("s_and_b32 s%d, s%d, 1" % (T1, S_SLOT))
        g.i("s_add_u32 s%d, s%d, s%d" % (S_DB4, T0, T1))
        g.i("s_lshr_b32 s%d, s%d, 2" % (T0, S_XCD))
        g.i("s_mul_i32 s%d, s%d, 11" % (T0, T0))
        g.i("s_lshr_b32 s%d, s%d, 1" % (T1, S_SLOT))
        g.i("s_add_u32 s%d, s%d, s%d" % (S_FB, T0, T1))
        g.i("s_cmp_lt_u32 s%d, 22" % S_SLOT)
        g.i("s_cselect_b32 s%d, s%d, 0" % (SRD_W1 + 2, SRD_W1 + 2))
        g.i("s_lshl_b32 s%d, s%d, 2" % (T0, S_XCD))
        g.i("s_lshr_b32 s%d, s%d, 3" % (T1, S_SLOT))
        g.i("s_add_u32 s%d, s%d, s%d" % (S_SB3, T0, T1))
        g.i("s_and_b32 s%d, s%d, 7" % (S_DB3, S_SLOT))
        g.i("s_lshr_b32 s%d, s%d, 1" % (T2, S_W))
        g.i("s_lshl_b32 s%d, s%d, 15" % (T2, T2))
        g.i("s_and_b32 s%d, s%d, 1" % (T1, S_W))
        g.i("s_lshl_b32 s%d, s%d, 6" % (T1, T1))
        g.i("s_add_u32 s%d, s%d, s%d" % (T2, T2, T1))
        for dst, sb_, db_ in ((S_OUTOFF, S_SB, S_DB), (S_XOFF, S_SB3, S_DB3)):
            g.i("s_lshl_b32 s%d, s%d, 16" % (T0, sb_))
            g.i("s_lshl_b32 s%d, s%d, 7" % (T1, db_))
            g.i("s_add_u32 s%d, s%d, s%d" % (T0, T0, T1))
            g.i("s_add_u32 s%d, s%d, s%d" % (dst, T0, T2))

    def tr_lane(self, dst, hshift):
        g = self
        g.i("v_lshrrev_b32 v1, 5, v0")
        g.i("v_lshlrev_b32 v1, %d, v1" % hshift)
        g.i("v_bfe_u32 v2, v0, 2, 2")
        g.i("v_add_u32 v1, v1, v2")
        g.i("v_lshlrev_b32 v1, 7, v1")
        g.i("v_bfe_u32 v2, v0, 4, 1")
        g.i("v_bfe_u32 v3, v0, 1, 1")
        g.i("v_lshl_add_u32 v2, v2, 1, v3")
        g.i("v_bfe_u32 v3, v0, 3, 1")
        g.i("v_lshlrev_b32 v3, 2, v3")
        g.i("v_xor_b32 v2, v2, v3")
        g.i("v_lshl_add_u32 v1, v2, 4, v1")
        g.i("v_and_b32 v3, 1, v0")
        g.i("v_lshl_add_u32 %s, v3, 3, v1" % v(dst))

    def tr_pair(self, dst, lane, base):
        g = self
        g.i("v_add_u32 %s, %s, %s" % (v(dst), str(base), v(lane)))
        g.i("v_xor_b32 %s, 64, %s" % (v(dst + 1), v(dst)))

    def dma_rows_voff(self, dst, pitch, colbytes_sgpr):
        g = self
        g.i("v_lshrrev_b32 v1, 3, v0")
        g.i("v_mul_u32_u24 v1, %d, v1" % pitch)
        g.i("v_and_b32 v2, 7, v0")
        g.i("v_bfe_u32 v3, v0, 4, 1")
        g.i("v_lshlrev_b32 v3, 2, v3")
        g.i("v_xor_b32 v2, v2, v3")
        g.i("v_lshlrev_b32 v2, 4, v2")
        g.i("v_add3_u32 %s, v1, v2, s%d" % (v(dst), colbytes_sgpr))

    def prefetch_setup(self):
        g = self
        g.i("s_lshl_b32 s%d, s%d, 7" % (T0, S_FB))
        g.dma_rows_voff(PF, 2752, T0)
        g.i("v_add_u32 %s, %d, %s" % (v(PF + 1), 8 * 2752, v(PF)))
        g.i("s_mul_i32 s%d, s%d, %d" % (S_PW1, S_W, 512 * 2752))
        g.i("s_lshl_b32 s%d, s%d, 7" % (T0, S_SB))
        g.dma_rows_voff(PF + 2, 4096, T0)
        g.i("v_add_u32 %s, %d, %s" % (v(PF + 3), 8 * 4096 - 1024, v(PF + 2)))
        g.i("s_mul_i32 s%d, s%d, %d" % (S_PW2, S_W, 22 * 16 * 4096))
        g.i("s_lshl_b32 s%d, s%d, 7" % (T0, S_DB3))
        g.dma_rows_voff(PF + 4, 1024, T0)
        g.i("v_add_u32 %s, %d, %s" % (v(PF + 5), 8 * 1024 - 1024, v(PF + 4)))
        g.i("s_lshl_b32 s%d, s%d, 17" % (S_PWO, S_W))
        g.i("s_lshr_b32 s%d, s%d, 1" % (T0, S_W))
        g.i("s_lshl_b32 s%d, s%d, 6" % (T0, T0))
        g.i("s_lshl_b32 s%d, s%d, 7" % (T1, S_FB))
        g.i("s_add_u32 s%d, s%d, s%d" % (S_B1OFF, T0, T1))
        g.i("s_lshl_b32 s%d, s%d, 7" % (T1, S_SB))
        g.i("s_add_u32 s%d, s%d, s%d" % (S_B2OFF, T0, T1))
        g.i("v_and_b32 v1, 31, v0")
        g.i("v_lshlrev_b32 v1, 10, v1")
        g.i("v_lshrrev_b32 v2, 5, v0")
        g.i("v_lshl_add_u32 %s, v2, 3, v1" % v(PF + 6))

    def job_wo(self, k):
        return [("s_mul_i32 s%d, s%d, 16384" % (S_PM0, S_W), None),
                ("s_add_u32 m0, s%d, %d" % (S_PM0, L_WO + k * 2048), None),
                ("buffer_load_dwordx4 %s, %s, s%d offen lds" % (v(PF + 4), sr(SRD_WO, 4), S_PWO), "pf"),
                ("buffer_load_dwordx4 %s, %s, s%d offen offset:1024 lds" % (v(PF + 5), sr(SRD_WO, 4), S_PWO), "pf"),
                ("s_add_u32 s%d, s%d, 16384" % (S_PWO, S_PWO), None)][(0 if k == 0 else 1):]

    def job_w1(self, j):
        return [("buffer_load_dwordx4 %s, %s, %s, s%d offen" % (ar(8 * j, 4), v(PF), sr(SRD_W1, 4), S_PW1), "pf"),
                ("buffer_load_dwordx4 %s, %s, %s, s%d offen" % (ar(8 * j + 4, 4), v(PF + 1), sr(SRD_W1, 4), S_PW1), "pf"),
                ("s_add_u32 s%d, s%d, %d" % (S_PW1, S_PW1, 16 * 2752), None)]

    def job_w2reg(self, r0, r1):
        return [("buffer_load_dwordx4 %s, %s, %s, s%d offen" % (r0, v(PF + 2), sr(SRD_W2, 4), S_PW2), "pf"),
                ("buffer_load_dwordx4 %s, %s, %s, s%d offen offset:1024" % (r1, v(PF + 3), sr(SRD_W2, 4), S_PW2), "pf"),
                ("s_add_u32 s%d, s%d, %d" % (S_PW2, S_PW2, 16 * 4096), None)]

    def job_w2lds(self, p):
        if p < NW2B:
            pre = [("s_mul_i32 s%d, s%d, %d" % (S_PM0, S_W, NW2B * 2048), None)] if p == 0 else []
            m0 = ("s_add_u32 m0, s%d, %d" % (S_PM0, L_W2B + p * 2048), None)
        else:
            q = p - NW2B
            pre = [("s_lshl_b32 s%d, s%d, 12" % (S_PM0, S_W), None)] if q == 0 else []
            m0 = ("s_add_u32 m0, s%d, %d" % (S_PM0, L_W2B2 + q * 2048), None)
        return pre + [m0,
                      ("buffer_load_dwordx4 %s, %s, s%d offen lds" % (v(PF + 2), sr(SRD_W2, 4), S_PW2), "pf"),
                      ("buffer_load_dwordx4 %s, %s, s%d offen offset:1024 lds" % (v(PF + 3), sr(SRD_W2, 4), S_PW2), "pf"),
                      ("s_add_u32 s%d, s%d, %d" % (S_PW2, S_PW2, 16 * 4096), None)]

    def job_x(self):
        return [("buffer_load_dwordx2 %s, %s, %s, s%d offen offset:%d" % (vr(XR + 2 * i4, 2), v(PF + 6), sr(SRD_X, 4), S_XOFF, 16 * i4), "pf") for i4 in range(4)]

    B1P = [136, 140, 142, 126]
    B2R = 125

    def job_bias(self):
        out = [("v_lshrrev_b32 v1, 5, v0", None), ("v_lshlrev_b32 v1, 3, v1", None)]
        for i4 in range(4):
            out.append(("buffer_load_dwordx2 %s, v1, %s, s%d offen offset:%d" % (vr(self.B1P[i4], 2), sr(SRD_B1, 4), S_B1OFF, 16 * i4), "pf"))
        out += [("v_and_b32 v2, 31, v0", None), ("v_lshlrev_b32 v2, 1, v2", None),
                ("buffer_load_ushort %s, v2, %s, s%d offen" % (v(self.B2R), sr(SRD_B2, 4), S_B2OFF), "pf")]
        return out

    def all_jobs(self):
        jobs = {}
        t = 0
        for k in range(8):
            jobs[t] = self.job_wo(k); t += 1
        for j in range(32):
            jobs[t] = self.job_w1(j); t += 1
        for j in range(NW2A):
            jobs[t] = self.job_w2reg(vr(W2A + 8 * j, 4), vr(W2A + 8 * j + 4, 4)); t += 1
        for p in range(NW2B):
            jobs[t] = self.job_w2lds(p); t += 1
        t = max(t, 56)
        for p in range(NW2B, NW2B + NW2B2):
            jobs[t] = self.job_w2lds(p); t += 1
        jobs[t] = self.job_x(); t += 1
        jobs[t] = self.job_bias(); t += 1
        assert t <= 64
        return jobs

    def p2_pre(self):
        g = self
        RS, TS = KV_RS, KV_TS
        S_HEAD, S_QB, S_KV, S_M0B = S_A, S_B, S_C, S_D
        VVA, VVB = 121, 122
        g.tiles()
        g.i("s_lshl_b32 s%d, s%d, 2" % (T0, S_XCD))
        g.i("s_lshr_b32 s%d, s%d, 3" % (T1, S_SLOT))
        g.i("s_add_u32 s%d, s%d, s%d" % (S_HEAD, T0, T1))
        g.i("s_and_b32 s%d, s%d, 7" % (S_QB, S_SLOT))
        g.i("v_and_b32 v1, 31, v0")
        g.i("v_min_u32 v1, 23, v1")
        g.i("v_lshrrev_b32 v2, 3, v1")
        g.i("v_mul_u32_u24 v2, %d, v2" % RS)
        g.i("v_and_b32 v3, 7, v1")
        g.i("v_mul_u32_u24 v3, %d, v3" % TS)
        g.i("v_add_u32 v2, v2, v3")
        for k in range(4):
            g.i("v_mov_b32 %s, 0x3f803f80" % v(16 + k))
            g.i("v_mov_b32 %s, 0" % v(20 + k))
        g.i("ds_write_b128 v2, %s offset:2048" % vr(16, 4))
        g.i("ds_write_b128 v2, %s offset:2064" % vr(20, 4))
        g.i("v_and_b32 v1, 31, v0")
        g.i("v_lshrrev_b32 v2, 5, v0")
        g.i("v_lshlrev_b32 v2, 8, v2")
        g.i("v_lshl_add_u32 v2, v1, 4, v2")
        g.i("v_add_u32 v2, 1024, v2")
        g.i("v_add_u32 v3, 512, v2")
        g.i("v_mov_b32 v4, 2048")
        g.i("v_mov_b32 v5, %d" % (2064 if not self.opts.get("allones") else 2048))
        g.i("v_cmp_eq_u32 vcc, 16, v1")
        g.i("v_cndmask_b32 v4, v5, v4, vcc")
        g.i("v_cmp_gt_u32 vcc, 16, v1")
        g.i("v_cndmask_b32 %s, v4, v2, vcc" % v(VVA))
        g.i("v_cndmask_b32 %s, v4, v3, vcc" % v(VVB))
        g.prefetch_setup()
        g.i("s_lshl_b32 s%d, s%d, 17" % (T0, S_HEAD))
        g.i("s_lshl_b32 s%d, s%d, 12" % (T1, S_W))
        g.i("s_add_u32 s%d, s%d, s%d" % (S_KV, T0, T1))
        g.i("s_add_u32 s%d, s%d, 0x%x" % (S_KV, S_KV, WS_KV))
        g.i("s_mul_i32 s%d, s%d, %d" % (S_M0B, S_W, 2 * TS))
        g.i("s_lshl_b32 s%d, s%d, 16" % (S_P0, S_HEAD))
        g.i("s_lshl_b32 s%d, s%d, 13" % (T1, S_QB))
        g.i("s_add_u32 s%d, s%d, s%d" % (S_P0, S_P0, T1))
        g.i("s_lshl_b32 s%d, s%d, 11" % (T1, S_W))
        g.i("s_add_u32 s%d, s%d, s%d" % (S_P0, S_P0, T1))
        g.i("s_add_u32 s%d, s%d, 0x%x" % (S_P0, S_P0, WS_QF))
        g.i("s_lshl_b32 s%d, s%d, 8" % (S_P1, S_HEAD))
        g.i("s_add_u32 s%d, s%d, 0x%x" % (S_P1, S_P1, WS_KMAX))
        g.i("v_lshlrev_b32 v7, 2, v0")
        g.cnt_off(S_WAIT, S_HEAD, C_B1, shift=1)
        g.i("s_lshl_b32 s%d, s%d, 3" % (S_P2, S_QB))
        g.i("s_lshl_b32 s%d, s%d, 1" % (T1, S_W))
        g.i("s_add_u32 s%d, s%d, s%d" % (S_P2, S_P2, T1))
        g.i("s_lshl_b32 s%d, s%d, 5" % (S_P2, S_P2))
        g.i("s_add_u32 s%d, s%d, s%d" % (S_P2, S_P2, S_HEAD))
        g.i("s_lshl_b32 s%d, s%d, 10" % (S_P2, S_P2))
        g.i("s_add_u32 s%d, s%d, 0x%x" % (S_P2, S_P2, WS_OF))
        g.i("s_add_u32 s%d, s%d, 32768" % (S_P3, S_P2))
        g.i("s_waitcnt lgkmcnt(0)")

    def p2(self):
        g = self
        RS, TS = KV_RS, KV_TS
        S_HEAD, S_QB, S_KV, S_M0B = S_A, S_B, S_C, S_D
        QA, QB = 8, 12
        KF = [16, 20]
        VF = [24, 32]
        SS = [40, 56]
        PK = [72, 80]
        O = [88, 104]
        VVA, VVB = 121, 122
        T = 124
        g.wait_cnt(S_WAIT, 16, 1)
        g.stamp(3)
        g.rstamp(29)

        def issue_chunk(c):
            slot = (c % KV_N) * RS
            t = ("kv", c)
            g.i("s_add_u32 m0, s%d, %d" % (S_M0B, slot))
            g.i("buffer_load_dwordx4 %s, %s, s%d offen sc1 lds" % (v(VL16), sr(SRD_WS, 4), S_KV), tag=t)
            g.i("buffer_load_dwordx4 %s, %s, s%d offen offset:1024 sc1 lds" % (v(VL16), sr(SRD_WS, 4), S_KV), tag=t)
            g.i("s_add_u32 m0, s%d, %d" % (S_M0B, slot + TS - 2048))
            g.i("buffer_load_dwordx4 %s, %s, s%d offen offset:2048 sc1 lds" % (v(VL16), sr(SRD_WS, 4), S_KV), tag=t)
            g.i("buffer_load_dwordx4 %s, %s, s%d offen offset:3072 sc1 lds" % (v(VL16), sr(SRD_WS, 4), S_KV), tag=t)
            g.i("s_add_u32 s%d, s%d, 16384" % (S_KV, S_KV))
        g.i("buffer_load_dwordx4 %s, %s, %s, s%d offen sc1" % (vr(QA, 4), v(VL16), sr(SRD_WS, 4), S_P0), tag="q")
        g.i("buffer_load_dwordx4 %s, %s, %s, s%d offen offset:1024 sc1" % (vr(QB, 4), v(VL16), sr(SRD_WS, 4), S_P0), tag="q")
        issue_chunk(0)
        g.i("buffer_load_dword %s, v7, %s, s%d offen sc1" % (v(T), sr(SRD_WS, 4), S_P1), tag="km")
        issue_chunk(1)
        g.vm_wait(("kv", 0))
        g.i("s_barrier")
        g.stamp(4)
        jobs = g.all_jobs() if not self.opts.get("nopf") else {}

        def off(Tn):
            return ((Tn >> 3) % KV_N) * RS + (Tn & 7) * TS
        g.i("ds_read_b128 %s, %s offset:%d" % (vr(KF[0], 4), v(VL16), off(0)))
        g.i("s_waitcnt lgkmcnt(0)")
        g.mfma(SS[0], vr(KF[0], 4), vr(QA, 4), "0")
        o_started = [False, False]

        def pv(which, vreg, half):
            c = vr(O[which], 16) if (o_started[which] or half == 1) else "0"
            g.mfma(O[which], vr(vreg + 4 * half, 4), vr(PK[which] + 4 * half, 4), c)
            if half == 1:
                o_started[which] = True

        for Tn in range(64):
            for which in range(2):
                cur, nxt = SS[which], SS[1 - which]
                pkc = PK[which]
                if which == 0 and (Tn & 7) == 7 and Tn < 63:
                    c = Tn >> 3
                    g.vm_wait(("kv", c + 1))
                    g.i("s_barrier")
                    if c + 2 < 8:
                        issue_chunk(c + 2)
                ex = ["v_exp_f32 %s, %s" % (v(cur + k), v(cur + k)) for k in range(16)]
                cv = ["v_cvt_pk_bf16_f32 %s, %s, %s" % (v(pkc + k), v(cur + 2 * k), v(cur + 2 * k + 1)) for k in range(8)]
                if which == 0:
                    g.mfma(nxt, vr(KF[Tn & 1], 4), vr(QB, 4), "0")
                    if Tn + 1 < 64:
                        g.i("ds_read_b128 %s, %s offset:%d" % (vr(KF[(Tn + 1) & 1], 4), v(VL16), off(Tn + 1)))
                    g.i("ds_read_b128 %s, %s offset:%d" % (vr(VF[Tn & 1], 4), v(VVA), off(Tn)))
                    g.i("ds_read_b128 %s, %s offset:%d" % (vr(VF[Tn & 1] + 4, 4), v(VVB), off(Tn)))
                    do_pv = Tn > 0
                    pvw, pvv = 1, VF[(Tn - 1) & 1]
                else:
                    g.i("s_waitcnt lgkmcnt(0)")
                    if Tn + 1 < 64:
                        g.mfma(nxt, vr(KF[(Tn + 1) & 1], 4), vr(QA, 4), "0")
                    do_pv = True
                    pvw, pvv = 0, VF[Tn & 1]
                for k in (0, 1, 2, 3, 4):
                    g.i(ex[k])
                g.i(cv[0]); g.i(cv[1])
                if do_pv:
                    pv(pvw, pvv, 0)
                for k in (5, 6, 7, 8, 9):
                    g.i(ex[k])
                g.i(cv[2]); g.i(cv[3])
                if do_pv:
                    pv(pvw, pvv, 1)
                if which == 1 and Tn in jobs:
                    for t_, tag in jobs[Tn]:
                        g.i(t_, tag=tag)
                g.i(ex[10]); g.i(ex[11]); g.i(cv[4]); g.i(ex[12]); g.i(ex[13]); g.i(cv[5])
                g.i(ex[14]); g.i(ex[15]); g.i(cv[6]); g.i(cv[7])
        pv(1, VF[63 & 1], 0)
        pv(1, VF[63 & 1], 1)
        g.stamp(5)
        g.rstamp(30)
        g.cnt_off(S_ARR, S_QB, C_B2)
        for which in range(2):
            o = O[which]
            g.cross_half(o + 8, 1)
            g.i("v_rcp_f32 %s, %s" % (v(T), v(o + 8)))
            for r in range(4):
                g.pk("mul", o + 2 * r, T, o + 2 * r, bx=True)
            for r in range(4):
                g.i("v_cvt_pk_bf16_f32 %s, %s, %s" % (v(PK[which] + r), v(o + 2 * r), v(o + 2 * r + 1)))
            g.i("buffer_store_dwordx4 %s, %s, %s, s%d offen sc1" % (vr(PK[which], 4), v(VL16), sr(SRD_WS, 4), S_P2 + which))
        if self.opts.get("nopf"):
            for Tn in sorted(g.all_jobs()):
                if Tn == 58:
                    g.i("s_barrier")
                for t_, tag in g.all_jobs()[Tn]:
                    g.i(t_, tag=tag)
        g.arrive(S_ARR, 1)
        if self.stop_after > 2:
            g.p3_pre()

    def p3_pre(self):
        g = self
        S_ST, S_KH = S_A, S_B
        g.i("s_lshr_b32 s%d, s%d, 1" % (S_ST, S_W))
        g.i("s_and_b32 s%d, s%d, 1" % (S_KH, S_W))
        VTR = 120
        g.tr_lane(7, 2)
        g.i("s_lshl_b32 s%d, s%d, 15" % (T1, S_KH))
        g.i("s_add_u32 s%d, s%d, %d" % (T1, T1, L_WO))
        g.tr_pair(VTR, 7, "s%d" % T1)
        g.i("s_lshl_b32 s%d, s%d, 1" % (S_P0, S_SB3))
        g.i("s_add_u32 s%d, s%d, s%d" % (S_P0, S_P0, S_ST))
        g.i("s_lshl_b32 s%d, s%d, 15" % (S_P0, S_P0))
        g.i("s_lshl_b32 s%d, s%d, 14" % (T1, S_KH))
        g.i("s_add_u32 s%d, s%d, s%d" % (S_P0, S_P0, T1))
        g.i("s_add_u32 s%d, s%d, 0x%x" % (S_P0, S_P0, WS_OF))
        g.i("s_lshl_b32 s%d, s%d, 13" % (T3, S_SB3))
        g.i("s_lshl_b32 s%d, s%d, 8" % (T1, S_ST))
        g.i("s_add_u32 s%d, s%d, s%d" % (T3, T3, T1))
        g.i("s_add_u32 s%d, s%d, 0x%x" % (S_F, T3, WS_STATS))
        g.i("s_lshl_b32 s%d, s%d, 1" % (T1, S_DB3))
        g.i("s_add_u32 s%d, s%d, s%d" % (T1, T1, S_KH))
        g.i("s_lshl_b32 s%d, s%d, 9" % (T1, T1))
        g.i("s_add_u32 s%d, s%d, s%d" % (S_E, T1, S_F))
        g.i("s_lshl_b32 s%d, s%d, 1" % (S_D, S_DB3))
        g.i("s_add_u32 s%d, s%d, s%d" % (S_D, S_D, S_KH))
        g.i("s_lshl_b32 s%d, s%d, 17" % (S_D, S_D))
        g.i("s_lshl_b32 s%d, s%d, 12" % (T1, S_SB3))
        g.i("s_add_u32 s%d, s%d, s%d" % (S_D, S_D, T1))
        g.i("s_lshl_b32 s%d, s%d, 11" % (T1, S_ST))
        g.i("s_add_u32 s%d, s%d, s%d" % (S_D, S_D, T1))
        g.i("s_add_u32 s%d, s%d, 0x%x" % (S_D, S_D, WS_HT))
        g.cnt_off(S_WAIT, S_SB3, C_B2, shift=2)
        g.i("s_lshl_b32 s%d, s%d, 3" % (S_P1, S_SB3))
        g.i("s_add_u32 s%d, s%d, s%d" % (S_P1, S_P1, S_DB3))
        g.i("s_lshl_b32 s%d, s%d, 2" % (S_P1, S_P1))
        g.i("s_add_u32 s%d, s%d, s%d" % (S_P1, S_P1, S_W))
        g.i("s_lshl_b32 s%d, s%d, 11" % (S_P1, S_P1))
        g.i("s_add_u32 s%d, s%d, 0x%x" % (S_P1, S_P1, WS_H))
        g.i("s_xor_b32 s%d, s%d, 1" % (T0, S_W))
        g.i("s_lshl_b32 s%d, s%d, 12" % (T0, T0))
        g.i("v_add_u32 v122, s%d, %s" % (T0, v(VL16)))
        g.i("s_lshl_b32 s%d, s%d, 12" % (S_C, S_W))
        g.i("v_add_u32 v123, s%d, %s" % (S_C, v(VL16)))

    def p3(self):
        g = self
        S_ST, S_KH = S_A, S_B
        OF = 8
        ACC = [72, 88]
        WF = [104, 112]
        VTR = 120
        T = 52
        for k in range(3):
            for dt in range(2):
                for hh in range(2):
                    g.i("ds_read_b64_tr_b16 %s, %s offset:%d" % (vr([56, 64, 104][k] + 4 * dt + 2 * hh, 2), v(VTR + dt), k * 2048 + hh * 1024))
        g.stamp(6)
        g.wait_cnt(S_WAIT, 32, 1)
        g.stamp(7)

        NOF = 12
        WFB = [56, 64, 104, 112]

        def ofload(k):
            if k and k % 4 == 0:
                g.i("s_add_u32 s%d, s%d, 4096" % (S_P0, S_P0))
            g.i("buffer_load_dwordx4 %s, %s, %s, s%d offen offset:%d sc1" % (vr(OF + 4 * (k % NOF), 4), v(VL16), sr(SRD_WS, 4), S_P0, (k % 4) * 1024), tag=("of", k))

        def wlist(k):
            return ["ds_read_b64_tr_b16 %s, %s offset:%d" % (vr(WFB[k % 4] + 4 * dt + 2 * hh, 2), v(VTR + dt), k * 2048 + hh * 1024) for dt in range(2) for hh in range(2)]
        for k in range(NOF):
            ofload(k)
        RX = 8
        for k in range(16):
            g.i("s_waitcnt lgkmcnt(%d)" % (4 * min(2, 15 - k)))
            g.vm_wait(("of", k))
            nx = wlist(k + 3) if k + 3 < 16 else []
            for dt in range(2):
                c = "0" if k == 0 else vr(ACC[dt], 16)
                g.mfma(ACC[dt], vr(WFB[k % 4] + 4 * dt, 4), vr(OF + 4 * (k % NOF), 4), c)
                for t_ in nx[2 * dt:2 * dt + 2]:
                    g.i(t_)
            if k + NOF < 16:
                ofload(k + NOF)
        g.stamp(20)
        labx = g.newlabel("L_kh1")
        labe = g.newlabel("L_khe")
        g.unpack_bf16(RX + 16, XR, 8)
        g.fence()
        g.i("s_cmp_eq_u32 s%d, 1" % S_KH)
        g.i("s_cbranch_scc1 %s" % labx)
        for i4 in range(4):
            g.i("ds_write_b128 v122, %s offset:%d" % (vr(ACC[1] + 4 * i4, 4), i4 * 1024))
        for r in range(8):
            g.pk("add", RX + 16 + 2 * r, RX + 16 + 2 * r, ACC[0] + 2 * r)
        g.i("s_branch %s" % labe)
        g.label(labx)
        for i4 in range(4):
            g.i("ds_write_b128 v122, %s offset:%d" % (vr(ACC[0] + 4 * i4, 4), i4 * 1024))
        for r in range(8):
            g.pk("add", RX + 16 + 2 * r, RX + 16 + 2 * r, ACC[1] + 2 * r)
        g.label(labe)
        g.i("s_waitcnt lgkmcnt(0)")
        g.i("s_barrier")
        for i4 in range(4):
            g.i("ds_read_b128 %s, v123 offset:%d" % (vr(RX + 4 * i4, 4), i4 * 1024))
        g.i("v_and_b32 v7, 31, v0")
        g.i("v_lshlrev_b32 v7, 3, v7")
        g.i("v_lshrrev_b32 v2, 5, v0")
        g.i("v_lshl_add_u32 v3, v2, 12, v7")
        g.i("s_mov_b32 s%d, -1" % S_EXEC)
        g.i("s_mov_b32 s%d, 0" % (S_EXEC + 1))
        g.i("s_waitcnt lgkmcnt(0)")
        A0 = RX + 16
        for r in range(8):
            g.pk("add", A0 + 2 * r, A0 + 2 * r, RX + 2 * r)
        H = HREG
        for r in range(8):
            g.i("v_cvt_pk_bf16_f32 %s, %s, %s" % (v(H + r), v(A0 + 2 * r), v(A0 + 2 * r + 1)))
        g.unpack_bf16(A0, H, 8)
        SP1, SP2 = 44, 46
        g.pk("add", SP1, A0, A0 + 2)
        g.pk("mul", SP2, A0, A0)
        for r in range(1, 8):
            if r > 1:
                g.pk("add", SP1, SP1, A0 + 2 * r)
            g.pk("fma", SP2, A0 + 2 * r, A0 + 2 * r, SP2)
        S1, S2 = 48, 49
        g.i("v_add_f32 %s, %s, %s" % (v(S1), v(SP1), v(SP1 + 1)))
        g.i("v_add_f32 %s, %s, %s" % (v(S2), v(SP2), v(SP2 + 1)))
        g.cross_half(S1, T)
        g.cross_half(S2, T)
        g.i("s_mov_b64 exec, %s" % sr(S_EXEC, 2))
        g.i("buffer_store_dwordx2 %s, v7, %s, s%d offen sc1" % (vr(S1, 2), sr(SRD_WS, 4), S_E))
        g.i("s_mov_b64 exec, -1")
        g.stamp(8)
        g.i("v_and_b32 v1, 31, v0")
        g.i("v_lshlrev_b32 v1, 6, v1")
        g.i("v_lshl_add_u32 v1, v2, 3, v1")
        g.i("v_add_u32 %s, s%d, v1" % (v(50), S_C))
        g.i("v_lshlrev_b32 v1, 3, v2")
        g.i("v_bfe_u32 v4, v0, 2, 2")
        g.i("v_add_u32 v1, v1, v4")
        g.i("v_lshlrev_b32 v1, 6, v1")
        g.i("v_bfe_u32 v4, v0, 4, 1")
        g.i("v_lshl_add_u32 v1, v4, 5, v1")
        g.i("v_and_b32 v4, 3, v0")
        g.i("v_lshl_add_u32 v1, v4, 3, v1")
        g.i("v_add_u32 %s, s%d, v1" % (v(51), S_C))
        G0 = 56
        loop = g.newlabel("L_stat")
        done = g.newlabel("L_statd")
        g.i("s_mov_b32 s%d, 0" % S_SPIN)
        g.label(loop)
        for k in range(8):
            g.i("buffer_load_dwordx2 %s, v3, %s, s%d offen offset:%d sc1" % (vr(G0 + 2 * k, 2), sr(SRD_WS, 4), S_F, k * 512))
        g.vm = []
        g.i("s_add_u32 s%d, s%d, 1" % (S_SPIN, S_SPIN))
        g.i("s_waitcnt vmcnt(0)")
        g.i("v_max3_u32 v1, %s, %s, %s" % (v(G0), v(G0 + 1), v(G0 + 2)))
        for k in range(3, 15, 2):
            g.i("v_max3_u32 v1, v1, %s, %s" % (v(G0 + k), v(G0 + k + 1)))
        g.i("v_max_u32 v1, v1, %s" % v(G0 + 15))
        g.i("v_cmp_eq_u32 vcc, -1, v1")
        g.i("s_cmp_eq_u64 vcc, 0")
        g.i("s_cbranch_scc1 %s" % done)
        g.i("s_cmp_lt_u32 s%d, 0x%x" % (S_SPIN, SPIN_MAX))
        g.i("s_cbranch_scc1 %s" % loop)
        g.label(done)
        g.stamp(9)
        for k in range(1, 8):
            g.pk("add", G0, G0, G0 + 2 * k)
        g.cross_half(G0, T)
        g.cross_half(G0 + 1, T)
        MEAN, VAR, R1, RR = 40, 41, 43, 42
        g.i("v_mul_f32 %s, %s, %s" % (v(MEAN), hexf(1.0 / 512), v(G0)))
        g.i("v_mul_f32 %s, %s, %s" % (v(VAR), hexf(1.0 / 512), v(G0 + 1)))
        g.i("v_fma_f32 %s, -%s, %s, %s" % (v(VAR), v(MEAN), v(MEAN), v(VAR)))
        g.i("v_max_f32 %s, 0, %s" % (v(VAR), v(VAR)))
        g.i("v_add_f32 %s, %s, %s" % (v(R1), hexf(1e-5), v(VAR)))
        g.i("v_rsq_f32 %s, %s" % (v(R1), v(R1)))
        g.i("v_mul_f32 %s, %s, %s" % (v(RR), v(R1), v(R1)))
        g.i("v_mul_f32 %s, %s, %s" % (v(RR), v(RR), v(VAR)))
        g.i("v_add_f32 %s, %s, %s" % (v(RR), hexf(1e-5), v(RR)))
        g.i("v_rsq_f32 %s, %s" % (v(RR), v(RR)))
        g.i("v_mul_f32 %s, %s, %s" % (v(RR), v(RR), v(R1)))
        for r in range(8):
            g.i("v_pk_add_f32 %s, %s, %s op_sel_hi:[1,0] neg_lo:[0,1] neg_hi:[0,1]" % (vr(A0 + 2 * r, 2), vr(A0 + 2 * r, 2), vr(MEAN, 2)))
        for r in range(8):
            g.pk("mul", A0 + 2 * r, RR, A0 + 2 * r, bx=True)
        PKD = 8
        for r in range(8):
            g.i("v_cvt_pk_bf16_f32 %s, %s, %s" % (v(PKD + r), v(A0 + 2 * r), v(A0 + 2 * r + 1)))
        for i4 in range(4):
            g.i("ds_write_b64 v50, %s offset:%d" % (vr(PKD + 2 * i4, 2), 16 * i4))
        FR = 16
        for j in range(2):
            for hh in range(2):
                g.i("ds_read_b64_tr_b16 %s, v51 offset:%d" % (vr(FR + 4 * j + 2 * hh, 2), j * 1024 + hh * 256))
        g.cnt_off(S_ARR, S_DB3, C_B4)
        g.i("s_waitcnt lgkmcnt(0)")
        g.stamp(22)
        for j in range(2):
            g.i("buffer_store_dwordx4 %s, %s, %s, s%d offen offset:%d sc1" % (vr(FR + 4 * j, 4), v(VL16), sr(SRD_WS, 4), S_D, j * 1024))
        for j in range(2):
            g.i("buffer_store_dwordx4 %s, %s, %s, s%d offen offset:%d sc1" % (vr(H + 4 * j, 4), v(VL16), sr(SRD_WS, 4), S_P1, j * 1024))
        g.arrive(S_ARR, 2)
        g.stamp(23)
        if self.stop_after > 3:
            g.p4_pre()

    def reduce4(self, acc):
        g = self
        done = g.newlabel("L_red")
        g.fence()
        for w in range(4):
            nxt = g.newlabel("L_rw")
            if w < 3:
                g.i("s_cmp_lg_u32 s%d, %d" % (S_W, w))
                g.i("s_cbranch_scc1 %s" % nxt)
            for d in range(4):
                if d == w:
                    continue
                sl = (w - d - 1) & 3
                base = L_SCR + d * 12288 + sl * 4096
                g.i("v_add_u32 v1, %d, %s" % (base, v(VL16)))
                for i4 in range(4):
                    g.i("ds_write_b128 v1, %s offset:%d" % (vr(acc + 16 * d + 4 * i4, 4), i4 * 1024))
            if w != 0:
                for r in range(8):
                    g.i("v_pk_add_f32 %s, %s, 0 op_sel_hi:[1,0]" % (vr(acc + 2 * r, 2), vr(acc + 16 * w + 2 * r, 2)))
            if w < 3:
                g.i("s_branch %s" % done)
                g.label(nxt)
        g.label(done)
        g.i("s_mul_i32 s%d, s%d, 12288" % (T0, S_W))
        g.i("s_add_u32 s%d, s%d, %d" % (T0, T0, L_SCR))
        g.i("v_add_u32 v1, s%d, %s" % (T0, v(VL16)))
        g.i("s_waitcnt lgkmcnt(0)")
        g.i("s_barrier")
        R = 72
        for sl in range(3):
            for i4 in range(4):
                g.i("ds_read_b128 %s, v1 offset:%d" % (vr(R + 16 * sl + 4 * i4, 4), sl * 4096 + i4 * 1024))
        g.i("s_waitcnt lgkmcnt(4)")
        for r in range(8):
            g.pk("add", R + 2 * r, R + 2 * r, R + 16 + 2 * r)
        for r in range(8):
            g.pk("add", acc + 2 * r, acc + 2 * r, R + 2 * r)
        g.i("s_waitcnt lgkmcnt(0)")
        for r in range(8):
            g.pk("add", acc + 2 * r, acc + 2 * r, R + 32 + 2 * r)

    P4_NS = 8

    def p4_lists(self):
        WF = [72, 80, 88]
        VTR, VST = 144, 146
        NS = self.P4_NS

        def wr_list(j):
            return ["ds_write_b128 %s, %s offset:%d" % (v(VST), ar(8 * j + 4 * hh, 4), (j % NS) * 2048 + hh * 1024) for hh in range(2)]

        def rd_list(j):
            return ["ds_read_b64_tr_b16 %s, %s offset:%d" % (vr(WF[j % 3] + 4 * t + 2 * hh, 2), v(VTR + t), (j % NS) * 2048 + hh * 512) for t in range(2) for hh in range(2)]
        return wr_list, rd_list

    def p4_pre(self):
        g = self
        VTR, VST = 144, 146
        S_A0, S_A1 = S_D, S_E
        g.i("s_lshl_b32 s%d, s%d, 18" % (T0, S_DB4))
        g.i("s_lshl_b32 s%d, s%d, 15" % (T1, S_W))
        g.i("s_add_u32 s%d, s%d, s%d" % (T0, T0, T1))
        g.i("s_add_u32 s%d, s%d, 0x%x" % (S_A0, T0, WS_HT))
        g.i("s_add_u32 s%d, s%d, 0x20000" % (S_A1, S_A0))
        g.tr_lane(7, 3)
        g.i("s_lshl_b32 s%d, s%d, 14" % (S_F, S_W))
        g.i("s_add_u32 s%d, s%d, %d" % (S_F, S_F, L_WO))
        g.tr_pair(VTR, 7, "s%d" % S_F)
        g.i("v_add_u32 %s, s%d, %s" % (v(VST), S_F, v(VL16)))
        wr_list, rd_list = g.p4_lists()
        for j in range(self.P4_NS):
            for t_ in wr_list(j):
                g.i(t_)
        for t_ in rd_list(0) + rd_list(1):
            g.i(t_)
        g.cnt_off(S_WAIT, S_DB4, C_B4)
        g.i("s_lshl_b32 s%d, s%d, 1" % (S_P0, S_FB))
        g.i("s_lshr_b32 s%d, s%d, 1" % (T1, S_W))
        g.i("s_add_u32 s%d, s%d, s%d" % (S_P0, S_P0, T1))
        g.i("s_lshl_b32 s%d, s%d, 11" % (S_P1, S_P0))
        g.i("s_lshl_b32 s%d, s%d, 1" % (T1, S_DB4))
        g.i("s_and_b32 s%d, s%d, 1" % (T2, S_W))
        g.i("s_add_u32 s%d, s%d, s%d" % (T1, T1, T2))
        g.i("s_mul_i32 s%d, s%d, %d" % (T1, T1, 88 * 1024))
        g.i("s_add_u32 s%d, s%d, s%d" % (S_P1, S_P1, T1))
        g.i("s_add_u32 s%d, s%d, 0x%x" % (S_P1, S_P1, WS_UF))

    def w2c_loads(self):
        CREG = 240
        for j in range(NW2C):
            for t_, tag in self.job_w2reg(ar(CREG + 8 * j, 4), ar(CREG + 8 * j + 4, 4)):
                self.i(t_, tag="w2c" if tag else None)

    def p4(self):
        g = self
        skip = "L_p4_skip"
        join = "L_p4_join"
        g.i("s_cmp_ge_u32 s%d, 22" % S_SLOT)
        g.i("s_cbranch_scc1 %s" % skip)
        ACC = 8
        WF = [72, 80, 88]
        ARING, NA = 96, 3
        S_A0, S_A1 = S_D, S_E
        NS = self.P4_NS
        DEP = self.opts.get("p4dep", 10)
        wr_list, rd_list = g.p4_lists()

        def actreg(j, t):
            return vr(ARING + 8 * j + 4 * t, 4) if j < NA else ar(8 * (j - NA) + 4 * t, 4)

        def act1(j, t):
            q = j % 4
            g.i("buffer_load_dwordx4 %s, %s, %s, s%d offen offset:%d sc1" % (actreg(j, t), v(VL16), sr(SRD_WS, 4), (S_A0, S_A1)[t], q * 1024), tag=("p4", j))
            if q == 3:
                g.i("s_add_u32 s%d, s%d, 4096" % ((S_A0, S_A1)[t], (S_A0, S_A1)[t]))
        g.i("s_waitcnt lgkmcnt(0)")
        g.stamp(10)
        g.wait_cnt(S_WAIT, 32, 1)
        g.stamp(11)
        for j in range(DEP):
            act1(j, 0); act1(j, 1)
        hist = []
        for j in range(32):
            newer = 0
            for kind, idx in reversed(hist):
                if kind == "r" and idx == j:
                    break
                newer += 1
            else:
                newer = 0 if not hist else newer
            g.i("s_waitcnt lgkmcnt(%d)" % min(newer, 15))
            g.vm_wait(("p4", j))
            side = [[], [], [], []]
            if j + 2 < 32:
                r_ = rd_list(j + 2)
                side[0] += r_[0:2]
                side[1] += r_[2:4]
                hist += [("r", j + 2)] * 4
            if j + NS < 32:
                w_ = wr_list(j + NS)
                side[2].append(w_[0])
                side[3].append(w_[1])
                hist += [("w", j + NS)] * 2
            k_ = 0
            for ft in range(2):
                for dt in range(2):
                    acc = ACC + 16 * (2 * ft + dt)
                    g.mfma(acc, vr(WF[j % 3] + 4 * ft, 4), actreg(j, dt), "0" if j == 0 else vr(acc, 16))
                    for t_ in side[k_]:
                        g.i(t_)
                    if k_ >= 2 and j + DEP < 32:
                        act1(j + DEP, k_ - 2)
                    k_ += 1
        g.w2c_loads()
        g.i("s_barrier")
        g.stamp(12)
        g.reduce4(ACC)
        g.stamp(24)
        U, E = ACC, 72
        for i4 in range(4):
            g.unpack_bf16(E + 4 * i4, self.B1P[i4], 2)
        for r in range(8):
            g.pk("add", U + 2 * r, U + 2 * r, E + 2 * r)
        c1 = -2.0 * 0.7978845608028654 * 1.4426950408889634
        c2 = c1 * 0.044715
        g.i("v_mov_b32 v2, %s" % hexf(c1))
        g.i("v_mov_b32 v4, %s" % hexf(c2))
        for r in range(8):
            g.pk("mul", E + 2 * r, U + 2 * r, U + 2 * r)
        for r in range(8):
            g.i("v_pk_fma_f32 %s, %s, v[4:5], v[2:3] op_sel_hi:[1,0,0]" % (vr(E + 2 * r, 2), vr(E + 2 * r, 2)))
        for r in range(8):
            g.pk("mul", E + 2 * r, E + 2 * r, U + 2 * r)
        for r in range(16):
            g.i("v_exp_f32 %s, %s" % (v(E + r), v(E + r)))
        for r in range(8):
            g.i("v_pk_add_f32 %s, %s, 1.0 op_sel_hi:[1,0]" % (vr(E + 2 * r, 2), vr(E + 2 * r, 2)))
        for r in range(16):
            g.i("v_rcp_f32 %s, %s" % (v(E + r), v(E + r)))
        for r in range(8):
            g.pk("mul", U + 2 * r, U + 2 * r, E + 2 * r)
        P = 96
        for r in range(8):
            g.i("v_cvt_pk_bf16_f32 %s, %s, %s" % (v(P + r), v(U + 2 * r), v(U + 2 * r + 1)))
        nz = g.newlabel("L_nz")
        g.i("s_cmp_lg_u32 s%d, 43" % S_P0)
        g.i("s_cbranch_scc1 %s" % nz)
        for r in range(8):
            g.i("v_mov_b32 %s, 0" % v(P + r))
        g.label(nz)
        g.cnt_off(S_ARR, S_DB4, C_B5)
        g.stamp(25)
        for j in range(2):
            g.i("buffer_store_dwordx4 %s, %s, %s, s%d offen offset:%d sc1" % (vr(P + 4 * j, 4), v(VL16), sr(SRD_WS, 4), S_P1, j * 1024))
        g.i("s_branch %s" % join)
        g.label(skip)
        saved = list(g.vm)
        g.w2c_loads()
        g.vm = saved
        g.label(join)
        g.fence()
        noarr = g.newlabel("L_noarr")
        g.i("s_cmp_ge_u32 s%d, 22" % S_SLOT)
        g.i("s_cbranch_scc1 %s" % noarr)
        g.arrive(S_ARR, 1)
        g.stamp(26)
        g.label(noarr)
        if self.stop_after > 4:
            g.p5_pre()
        g.vm_wait_all()

    P5_NK = 22

    def p5_lists(self):
        WF = [72, 80, 88]
        VTR, VTB, VTB2, VST = 144, 146, 148, 150
        CREG = 240
        NK = self.P5_NK

        def staged(j):
            return j < NW2A or j >= NW2A + NW2B + NW2B2

        def wr_list(j):
            if j >= NK or not staged(j):
                return []
            out = []
            for hh in range(2):
                src = vr(W2A + 8 * j + 4 * hh, 4) if j < NW2A else ar(CREG + 8 * (j - (NK - NW2C)) + 4 * hh, 4)
                out.append("ds_write_b128 %s, %s offset:%d" % (v(VST), src, (j % 4) * 2048 + hh * 1024))
            return out

        def rd_list(j):
            if j >= NK:
                return []
            if staged(j):
                reg, o = VTR, (j % 4) * 2048
            elif j < NW2A + NW2B:
                reg, o = VTB, (j - NW2A) * 2048
            else:
                reg, o = VTB2, (j - NW2A - NW2B) * 2048
            return ["ds_read_b64_tr_b16 %s, %s offset:%d" % (vr(WF[j % 3] + 4 * t + 2 * hh, 2), v(reg + t), o + hh * 1024) for t in range(2) for hh in range(2)]
        return wr_list, rd_list

    def p5_pre(self):
        g = self
        VTR, VTB, VTB2, VST = 144, 146, 148, 150
        S_A0, S_A1 = S_D, S_E
        g.i("s_mul_i32 s%d, s%d, %d" % (T0, S_DB, 2 * 88 * 1024))
        g.i("s_mul_i32 s%d, s%d, %d" % (T1, S_W, 22 * 1024))
        g.i("s_add_u32 s%d, s%d, s%d" % (T0, T0, T1))
        g.i("s_add_u32 s%d, s%d, 0x%x" % (S_A0, T0, WS_UF))
        g.i("s_add_u32 s%d, s%d, %d" % (S_A1, S_A0, 88 * 1024))
        g.tr_lane(7, 2)
        g.i("s_lshl_b32 s%d, s%d, 13" % (S_F, S_W))
        g.tr_pair(VTR, 7, "s%d" % S_F)
        g.i("v_add_u32 %s, s%d, %s" % (v(VST), S_F, v(VL16)))
        g.i("s_mul_i32 s%d, s%d, %d" % (T0, S_W, NW2B * 2048))
        g.i("s_add_u32 s%d, s%d, %d" % (T0, T0, L_W2B))
        g.tr_pair(VTB, 7, "s%d" % T0)
        g.i("s_lshl_b32 s%d, s%d, 12" % (T0, S_W))
        g.i("s_add_u32 s%d, s%d, %d" % (T0, T0, L_W2B2))
        g.tr_pair(VTB2, 7, "s%d" % T0)
        wr_list, rd_list = g.p5_lists()
        for t_ in wr_list(0) + wr_list(1) + wr_list(2) + wr_list(3) + rd_list(0) + rd_list(1):
            g.i(t_)
        g.cnt_off(S_WAIT, S_DB, C_B5)
        g.i("s_lshl_b32 s%d, s%d, 3" % (S_P2, S_SB))
        g.i("s_add_u32 s%d, s%d, s%d" % (S_P2, S_P2, S_DB))
        g.i("s_lshl_b32 s%d, s%d, 2" % (S_P2, S_P2))
        g.i("s_add_u32 s%d, s%d, s%d" % (S_P2, S_P2, S_W))
        g.i("s_lshl_b32 s%d, s%d, 11" % (S_P2, S_P2))
        g.i("s_add_u32 s%d, s%d, 0x%x" % (S_P2, S_P2, WS_H))
        g.i("v_and_b32 v1, 31, v0")
        g.i("v_lshlrev_b32 v1, 10, v1")
        g.i("v_lshrrev_b32 v2, 5, v0")
        g.i("v_lshl_add_u32 v151, v2, 4, v1")

    def p5(self):
        g = self
        ACC = 8
        WF = [72, 80, 88]
        NK = self.P5_NK
        S_A0, S_A1 = S_D, S_E
        wr_list, rd_list = g.p5_lists()

        def act1(j, t):
            q = j % 4
            g.i("buffer_load_dwordx4 %s, %s, %s, s%d offen offset:%d sc1" % (ar(8 * j + 4 * t, 4), v(VL16), sr(SRD_WS, 4), (S_A0, S_A1)[t], q * 1024), tag=("p5", j))
            if q == 3:
                g.i("s_add_u32 s%d, s%d, 4096" % ((S_A0, S_A1)[t], (S_A0, S_A1)[t]))
        g.i("s_waitcnt lgkmcnt(0)")
        g.stamp(13)
        g.wait_cnt(S_WAIT, 22, 1)
        g.stamp(14)
        DEP = self.opts.get("p5dep", 8)
        for j in range(DEP):
            act1(j, 0); act1(j, 1)
        for j in range(2):
            g.i("buffer_load_dwordx4 %s, %s, %s, s%d offen offset:%d sc1" % (vr(HREG + 4 * j, 4), v(VL16), sr(SRD_WS, 4), S_P2, j * 1024), tag="h")
        hist = []
        for j in range(NK):
            newer = 0
            for kind, idx in reversed(hist):
                if kind == "r" and idx == j:
                    break
                newer += 1
            g.i("s_waitcnt lgkmcnt(%d)" % min(newer, 15))
            g.vm_wait(("p5", j))
            r_ = rd_list(j + 2)
            w_ = wr_list(j + 4)
            side = [r_[0:2], r_[2:4], w_[0:1], w_[1:2]]
            hist += [("r", j + 2)] * len(r_) + [("w", j + 4)] * len(w_)
            k_ = 0
            for st in range(2):
                for dt in range(2):
                    acc = ACC + 16 * (2 * st + dt)
                    g.mfma(acc, ar(8 * j + 4 * dt, 4), vr(WF[j % 3] + 4 * st, 4), "0" if j == 0 else vr(acc, 16))
                    for t_ in side[k_]:
                        g.i(t_)
                    if k_ >= 2 and j + DEP < NK:
                        act1(j + DEP, k_ - 2)
                    k_ += 1
        g.stamp(15)
        g.vm_wait_all()
        H = HREG
        U, E = ACC, 120
        g.i("v_lshlrev_b32 v2, 16, %s" % v(self.B2R))
        g.reduce4(ACC)
        g.stamp(27)
        E = 72
        g.unpack_bf16(E, H, 8)
        for r in range(8):
            g.i("v_pk_add_f32 %s, %s, v[2:3] op_sel_hi:[1,0]" % (vr(U + 2 * r, 2), vr(U + 2 * r, 2)))
        for r in range(8):
            g.pk("add", U + 2 * r, U + 2 * r, E + 2 * r)
        P = 96
        for r in range(8):
            g.i("v_cvt_pk_bf16_f32 %s, %s, %s" % (v(P + r), v(U + 2 * r), v(U + 2 * r + 1)))
        for q in range(2):
            g.i("v_permlane32_swap_b32 %s, %s" % (v(P + 4 * q), v(P + 4 * q + 2)))
            g.i("v_permlane32_swap_b32 %s, %s" % (v(P + 4 * q + 1), v(P + 4 * q + 3)))
        for q in range(2):
            g.i("buffer_store_dwordx4 %s, v151, %s, s%d offen offset:%d" % (vr(P + 4 * q, 4), sr(SRD_OUT, 4), S_OUTOFF, 32 * q))

    def build(self):
        g = self
        phases = [g.p1, g.p2, g.p3, g.p4, g.p5]
        for k, ph in enumerate(phases):
            ph()
            if self.stop_after == k + 1:
                break
        g.vm_wait_all()
        g.rstamp(31)
        g.stamp(16)
        g.vm_wait_all()
        if self.opts.get("dbgt"):
            lab = g.newlabel("L_dbgt")
            g.i("s_and_b32 s48, s2, 63")
            g.i("s_or_b32 s48, s48, s%d" % S_W)
            g.i("s_cmp_lg_u32 s48, 0")
            g.i("s_cbranch_scc1 %s" % lab)
            g.i("s_memtime s[76:77]")
            g.i("s_waitcnt lgkmcnt(0)")
            g.i("s_sub_u32 s76, s76, s100")
            g.i("s_mov_b32 s78, 0")
            g.i("s_lshr_b32 s48, s2, 6")
            g.i("s_lshl_b32 s48, s48, 3")
            g.i("s_add_u32 s48, s48, 8")
            g.i("v_mov_b32 v1, s48")
            g.i("v_mov_b32 v2, s76")
            g.i("v_mov_b32 v3, s78")
            g.i("s_mov_b64 exec, 1")
            g.i("global_store_dwordx2 v1, v[2:3], %s" % sr(S_DBG, 2))
            g.i("s_waitcnt vmcnt(0)")
            g.label(lab)
        g.i("s_endpgm")
        g.label("L_exit")
        g.i("s_endpgm")
        return g.text()


HEADER = """; Fused pre-LN MHA block + MLP-Mixer token MLP, one persistent launch (256 workgroups x 4 waves).
; @launch grid=(256,1,1) block=(256,1,1) lds=163840
.amdgcn_target "amdgcn-amd-amdhsa--gfx950"
.text
.globl {name}_kernel
.p2align 8
.type {name}_kernel,@function
{name}_kernel:
"""
FOOTER = """.section .rodata,"a"
.p2align 6
.amdhsa_kernel {name}_kernel
  .amdhsa_next_free_vgpr 512
  .amdhsa_next_free_sgpr 102
  .amdhsa_accum_offset 256
  .amdhsa_group_segment_fixed_size 0
  .amdhsa_kernarg_size 88
  .amdhsa_user_sgpr_count 2
  .amdhsa_user_sgpr_kernarg_segment_ptr 1
  .amdhsa_system_sgpr_workgroup_id_x 1
.end_amdhsa_kernel
"""


def generate(stop_after=99, opts=None):
    g = Gen(stop_after, opts)
    body = g.build()
    return HEADER.format(name=NAME) + body + FOOTER.format(name=NAME), g


if __name__ == "__main__":
    out = sys.argv[1] if len(sys.argv) > 1 else "cdna_kernels/%s.s" % NAME
    stop = int(sys.argv[2]) if len(sys.argv) > 2 else 99
    opts = {}
    for a_ in sys.argv[3:]:
        k_, _, v_ = a_.partition("=")
        opts[k_] = int(v_) if v_ else 1
    txt, g = generate(stop, opts)
    open(out, "w").write(txt)
    print("wrote %s: %d lines, %d bytes, %d nop states" % (out, txt.count("\n"), len(txt), g.nops))
```
